```python
import torch

def _softmax(x, axis=-1):
    return torch.softmax(x, dim=axis)
def _gelu(x):
    return torch.nn.functional.gelu(x, approximate="tanh")
def _silu(x):
    return torch.nn.functional.silu(x)
def _sigmoid(x):
    return torch.sigmoid(x)
def _layernorm(x, axis=-1, eps=1e-5):
    m = x.mean(dim=axis, keepdim=True)
    v = x.var(dim=axis, keepdim=True, unbiased=False)
    return (x - m) / torch.sqrt(v + eps)
def _scatter_add(tgt, idx, src, axis=0):
    return tgt.clone().index_add_(axis, idx, src)
def _segment_sum(src, seg, n):
    out = torch.zeros((n,) + src.shape[1:], dtype=src.dtype)
    return out.index_add_(0, seg, src)
def _pad(x, pw):
    flat = tuple(v for pair in reversed(pw) for v in pair)
    return torch.nn.functional.pad(x, flat)

kernel_name = 'standalone__low_rank_proj_linformer__sampling'

def setup_inputs():

    _w = (lambda a: (lambda t: t.to(torch.bfloat16) if t.is_floating_point() else t)(torch.as_tensor(a)))
    B, H, Sq, Skv, Dh, R = 16, 32, 32, 4096, 128, 16
    return {
        "q": _w((lambda *s: torch.randn(*s, dtype=torch.bfloat16) * 0.8)(B, H, Sq, Dh)),
        "k": _w((lambda *s: torch.randn(*s, dtype=torch.bfloat16) * 0.8)(B, H, Skv, Dh)),
        "v": _w((lambda *s: torch.randn(*s, dtype=torch.bfloat16) * 0.05)(B, H, Skv, Dh)),
        "e_proj": _w((lambda *s: torch.randn(*s, dtype=torch.bfloat16) * 0.8)(R, Skv) * (Skv ** -0.5)),
        "f_proj": _w((lambda *s: torch.randn(*s, dtype=torch.bfloat16) * 0.05)(R, Skv) * (Skv ** -0.5)),
    }

def reference(q, k, v, e_proj, f_proj):
    B, H, Sq, Dh = q.shape
    kp = torch.einsum("rn,bhnd->bhrd", e_proj, k)
    vp = torch.einsum("rn,bhnd->bhrd", f_proj, v)
    scores = torch.einsum("bhqd,bhrd->bhqr", q, kp) * (Dh ** -0.5)
    p = _softmax(scores, axis=-1)
    o = torch.einsum("bhqr,bhrd->bhqd", p, vp)
    return o
```

```python
import sys, argparse, math

NAME = "standalone__low_rank_proj_linformer__sampling"
HEADER = open('cdna_kernels/' + NAME + '.s.ref').read().split('; @launch')[0]


def gen(lo=3, hi=3, flags='nt', eflags='', qflags='nt', oflags='nt', ts=0, tsdiv=2, rot=0, noe=0, ldsx=65536, nvf=0,
        ctl=0, cdiv=2, nrep=16, thr=0, ctlk=0, rdiv=2, tpb=5625, thr2=0, pflags='sc0 sc1', sflags='sc0 sc1', nopoll=0, norep=0, noclk=0):
    L = []
    A = L.append
    N = hi
    BPM = 128
    lds = max(8192, ldsx)
    A(HEADER + f"; @launch grid=(512,1,1) block=(64,1,1) lds={lds}")
    A('.amdgcn_target "amdgcn-amd-amdhsa--gfx950"')
    A(".text")
    A(f".globl {NAME}_kernel")
    A(".p2align 8")
    A(f".type {NAME}_kernel,@function")
    A(f"{NAME}_kernel:")
    VOFF_D, VOFF_E, VLDS_Q, VOFF_O, VTS, VPRG, VPOFF = 1, 2, 3, 4, 5, 6, 7
    VREP = 83
    ACC = 8
    T = [40, 44]
    P = 48
    X = 52
    Q = 68
    BUF0 = 84
    def bufd(b, i): return BUF0 + 36 * b + 4 * i
    def bufe(b): return BUF0 + 36 * b + 32
    NV = max(BUF0 + 36 * N, BUF0 + 64)
    assert NV <= 256, NV
    SD, SP, SQ, SO, SG = 16, 20, 24, 28, 32
    SVB, SFB = 36, 38
    SSEL0, SSEL1, SIT, SDOFF, SEOFF, SF_, SDEP, SCNT, STS = 40, 41, 42, 43, 44, 45, 46, 47, 63
    ntf = (" " + flags) if flags else ""
    entf = (" " + eflags) if eflags else ""
    qf = (" " + qflags) if qflags else ""
    of = (" " + oflags) if oflags else ""
    uid = [0]
    def lab(p):
        uid[0] += 1
        return f"L_{p}{uid[0]}"

    def stamp(inloop=False):
        if not ts:
            return
        lbl = lab("ts")
        if inloop and tsdiv > 1:
            A(f"    s_and_b32 s52, s{SIT}, {tsdiv-1}")
            A(f"    s_cmp_lg_u32 s52, {tsdiv-1}")
            A(f"    s_cbranch_scc1 {lbl}")
        A("    s_memrealtime s[50:51]")
        A(f"    s_mov_b32 m0, s{STS}")
        A("    s_waitcnt lgkmcnt(0)")
        A(f"    v_writelane_b32 v{VTS}, s50, m0")
        A(f"    s_add_u32 s{STS}, s{STS}, 1")
        A(f"{lbl}:")

    A("    s_cmp_ge_u32 s2, 512")
    A("    s_cbranch_scc1 L_end")
    if ts:
        A(f"    s_mov_b32 s{STS}, 0")
        A(f"    v_mov_b32 v{VTS}, 0")
        stamp()
    A("    s_load_dwordx8 s[4:11], s[0:1], 0")
    A("    s_load_dwordx4 s[12:15], s[0:1], 32")
    A("    s_load_dwordx4 s[56:59], s[0:1], 48")
    A("    v_and_b32 v9, 15, v0")
    A("    v_lshrrev_b32 v10, 4, v0")
    A(f"    v_lshlrev_b32 v{VOFF_D}, 11, v10")
    A(f"    v_lshl_add_u32 v{VOFF_D}, v9, 4, v{VOFF_D}")
    A(f"    v_lshlrev_b32 v{VOFF_E}, 13, v9")
    A(f"    v_lshl_add_u32 v{VOFF_E}, v10, 4, v{VOFF_E}")
    A("    s_lshl_b32 s3, s2, 20")
    A("    s_lshl_b32 s48, s2, 13")
    A(f"    s_mov_b32 s{SD+2}, 0x100000")
    A(f"    s_mov_b32 s{SD+3}, 0x20000")
    A(f"    s_mov_b32 s{SP+2}, 0x20000")
    A(f"    s_mov_b32 s{SP+3}, 0x20000")
    if rot:
        A("    s_lshr_b32 s49, s2, 3")
        A(f"    s_mul_i32 s49, s49, {rot}")
        A(f"    s_and_b32 s49, s49, {BPM-1}")
        A(f"    s_lshl_b32 s{SDOFF}, s49, 13")
        A(f"    s_lshl_b32 s{SEOFF}, s49, 6")
    else:
        A(f"    s_mov_b32 s{SDOFF}, 0")
        A(f"    s_mov_b32 s{SEOFF}, 0")
    A(f"    s_mov_b32 s{SCNT}, 0")
    A("    s_waitcnt lgkmcnt(0)")
    A(f"    s_add_u32 s{SD}, s6, s3")
    A(f"    s_addc_u32 s{SD+1}, s7, 0")
    A(f"    s_mov_b32 s{SP}, s10")
    A(f"    s_mov_b32 s{SP+1}, s11")

    PER = 8 if noe else 9
    def loads(b, check=True):
        for i in range(8):
            r = bufd(b, i)
            off = f" offset:{i*256}" if i else ""
            A(f"    buffer_load_dwordx4 v[{r}:{r+3}], v{VOFF_D}, s[{SD}:{SD+3}], s{SDOFF} offen{off}{ntf}")
        if not noe:
            A(f"    buffer_load_dwordx4 v[{bufe(b)}:{bufe(b)+3}], v{VOFF_E}, s[{SP}:{SP+3}], s{SEOFF} offen{entf}")
        A(f"    s_add_u32 s{SDOFF}, s{SDOFF}, 0x2000")
        A(f"    s_add_u32 s{SEOFF}, s{SEOFF}, 64")
        A(f"    s_and_b32 s{SDOFF}, s{SDOFF}, 0xfffff")
        A(f"    s_and_b32 s{SEOFF}, s{SEOFF}, 0x1fff")
        A(f"    s_add_u32 s{SCNT}, s{SCNT}, 1")
        if check == 'K':
            A(f"    s_cmp_eq_u32 s{SCNT}, 128")
            A(f"    s_cselect_b64 s[{SD}:{SD+1}], s[{SVB}:{SVB+1}], s[{SD}:{SD+1}]")
            A(f"    s_cselect_b64 s[{SP}:{SP+1}], s[{SFB}:{SFB+1}], s[{SP}:{SP+1}]")
        elif check == 'V':
            A(f"    s_cmp_eq_u32 s{SCNT}, 256")
            A(f"    s_cselect_b32 s{SD+2}, 0, s{SD+2}")
            A(f"    s_cselect_b32 s{SP+2}, 0, s{SP+2}")

    def perms(b, e):
        w, h = e >> 1, e & 1
        t = T[e & 1]
        sel = SSEL1 if h else SSEL0
        for q in range(4):
            lo_ = bufd(b, 2 * q) + w
            hi_ = bufd(b, 2 * q + 1) + w
            A(f"    v_perm_b32 v{t+q}, v{hi_}, v{lo_}, s{sel}")

    def mfma(b, e, isK):
        t = T[e & 1]
        a = ACC + 4 * e
        eb = bufe(b)
        if isK:
            A(f"    v_mfma_f32_16x16x32_bf16 v[{a}:{a+3}], v[{t}:{t+3}], v[{eb}:{eb+3}], v[{a}:{a+3}]")
        else:
            A(f"    v_mfma_f32_16x16x32_bf16 v[{a}:{a+3}], v[{eb}:{eb+3}], v[{t}:{t+3}], v[{a}:{a+3}]")

    def compute(b, isK):
        perms(b, 0)
        for e in range(8):
            if e < 7:
                perms(b, e + 1)
            else:
                A("    s_nop 1")
            mfma(b, e, isK)

    d0 = lo
    for b in range(d0):
        loads(b, check=None)
    A(f"    s_add_u32 s{SQ}, s4, s48")
    A(f"    s_addc_u32 s{SQ+1}, s5, 0")
    A(f"    s_mov_b32 s{SQ+2}, 0x2000")
    A(f"    s_mov_b32 s{SQ+3}, 0x20000")
    A("    s_mov_b32 m0, 0")
    A(f"    v_lshlrev_b32 v11, 4, v0")
    for j in range(4):
        off = f" offset:{j*1024}" if j else ""
        A(f"    buffer_load_dwordx4 v11, s[{SQ}:{SQ+3}], 0 offen{off}{qf} lds")
    A("    s_movk_i32 s49, 0x1000")
    A("    s_mov_b32 m0, s49")
    A("    s_nop 0")
    for j in range(4):
        off = f" offset:{j*1024}" if j else ""
        A(f"    buffer_load_dwordx4 v11, s[{SQ}:{SQ+3}], s49 offen{off}{qf} lds")
    A(f"    s_add_u32 s{SVB}, s8, s3")
    A(f"    s_addc_u32 s{SVB+1}, s9, 0")
    A(f"    s_mov_b32 s{SFB}, s12")
    A(f"    s_mov_b32 s{SFB+1}, s13")
    A(f"    s_add_u32 s{SO}, s14, s48")
    A(f"    s_addc_u32 s{SO+1}, s15, 0")
    A(f"    s_mov_b32 s{SO+2}, 0x2000")
    A(f"    s_mov_b32 s{SO+3}, 0x20000")
    A(f"    s_mov_b32 s{SG}, s56")
    A(f"    s_mov_b32 s{SG+1}, s57")
    A(f"    s_mov_b32 s{SG+2}, {nrep*4}")
    A(f"    s_mov_b32 s{SG+3}, 0x20000")
    A(f"    s_mov_b32 s{SSEL0}, 0x05040100")
    A(f"    s_mov_b32 s{SSEL1}, 0x07060302")
    A(f"    v_lshlrev_b32 v{VLDS_Q}, 8, v9")
    A(f"    v_lshl_add_u32 v{VLDS_Q}, v10, 6, v{VLDS_Q}")
    A(f"    v_lshlrev_b32 v{VOFF_O}, 10, v10")
    A(f"    v_lshl_add_u32 v{VOFF_O}, v9, 4, v{VOFF_O}")
    A(f"    v_lshlrev_b32 v{VPOFF}, 2, v0")
    A(f"    v_mov_b32 v{VPRG}, 0")
    for i in range(32):
        A(f"    v_mov_b32 v{ACC+i}, 0")
    if noe:
        for b in range(N):
            for i in range(4):
                A(f"    v_mov_b32 v{bufe(b)+i}, 0x3c003c00")
    A(f"    s_mov_b32 s{SF_}, {d0}")
    A(f"    s_mov_b32 s{SDEP}, {d0}")

    def step(j, isK, ctl_here):
        chk = 'K' if isK else 'V'
        if lo == hi:
            A(f"    s_waitcnt vmcnt({PER*(lo-1)})")
        else:
            done = lab("w")
            for f in range(hi, lo, -1):
                nx = lab("w")
                A(f"    s_cmp_lg_u32 s{SF_}, {f}")
                A(f"    s_cbranch_scc1 {nx}")
                A(f"    s_waitcnt vmcnt({PER*(f-1)})")
                A(f"    s_branch {done}")
                A(f"{nx}:")
            A(f"    s_waitcnt vmcnt({PER*(lo-1)})")
            A(f"{done}:")
        if ctl_here:
            control(isK)
        compute(j, isK)
        if lo == hi:
            loads((j + lo) % N, chk)
        else:
            for k in range(lo, hi + 1):
                skip = lab("s")
                if k < hi:
                    A(f"    s_cmp_gt_u32 s{SF_}, {k}")
                    A(f"    s_cbranch_scc1 {skip}")
                if k > lo:
                    A(f"    s_cmp_lt_u32 s{SDEP}, {k}")
                    A(f"    s_cbranch_scc1 {skip}")
                loads((j + k) % N, chk)
                A(f"{skip}:")
            A(f"    s_sub_u32 s{SF_}, s{SF_}, 1")
            A(f"    s_max_u32 s{SF_}, s{SF_}, s{SDEP}")

    def control(isK):
        assert nrep == 16
        tp = int(round(tpb * 128 / 100))
        if not noclk:
            A("    s_memrealtime s[64:65]")
        A(f"    s_sub_u32 s55, s{SCNT}, s{SF_}")
        A(f"    s_mul_i32 s55, s55, {tp}")
        A(f"    s_lshr_b32 s55, s55, 7")
        A("    s_waitcnt lgkmcnt(0)")
        A("    s_sub_u32 s55, s64, s55")
        A("    s_or_b32 s55, s55, 1")
        skip = lab("c")
        A(f"    s_and_b32 s52, s{SIT}, {cdiv-1}")
        A(f"    s_cmp_lg_u32 s52, 1")
        A(f"    s_cbranch_scc1 {skip}")
        A(f"    v_cmp_ne_u32 vcc, 0, v{VPRG}")
        A(f"    v_subrev_u32 v{VPRG}, s55, v{VPRG}")
        A(f"    v_cndmask_b32 v{VPRG}, 0, v{VPRG}, vcc")
        A("    s_nop 1")
        for sh in (8, 4, 2, 1):
            A(f"    v_add_u32_dpp v{VPRG}, v{VPRG}, v{VPRG} row_shr:{sh} row_mask:0xf bank_mask:0xf")
            A("    s_nop 1")
        A(f"    v_readlane_b32 s53, v{VPRG}, 15")
        A("    s_nop 0")
        A("    s_ashr_i32 s53, s53, 4")
        A("    s_add_u32 s54, s55, s53")
        A(f"{skip}:")
        skip = lab("c")
        A(f"    s_and_b32 s52, s{SIT}, {cdiv-1}")
        A(f"    s_cmp_lg_u32 s52, 0")
        A(f"    s_cbranch_scc1 {skip}")
        if not nopoll:
            A(f"    buffer_load_dword v{VPRG}, v{VPOFF}, s[{SG}:{SG+3}], 0 offen {pflags}")
        A(f"{skip}:")
        nr = lab("c")
        A(f"    s_cmp_ge_u32 s2, {nrep}")
        A(f"    s_cbranch_scc1 {nr}")
        A(f"    s_and_b32 s52, s{SIT}, {rdiv-1}")
        A(f"    s_cmp_lg_u32 s52, 0")
        A(f"    s_cbranch_scc1 {nr}")
        A(f"    v_mov_b32 v{VREP}, s55")
        A(f"    s_lshl_b32 s52, s2, 2")
        A(f"    s_mov_b64 exec, 1")
        if not norep:
            A(f"    buffer_store_dword v{VREP}, off, s[{SG}:{SG+3}], s52 {sflags}")
        A(f"    s_mov_b64 exec, -1")
        A(f"{nr}:")
        A("    s_sub_u32 s52, s55, s54")
        A("    s_cmp_eq_u32 s54, 0")
        A("    s_cselect_b32 s52, 0x80000000, s52")
        A(f"    s_mov_b32 s{SDEP}, {lo}")
        if hi - lo == 1:
            A(f"    s_cmp_gt_i32 s52, {thr}")
            A(f"    s_cselect_b32 s{SDEP}, {hi}, s{SDEP}")
        else:
            A(f"    s_cmp_gt_i32 s52, {thr}")
            A(f"    s_cselect_b32 s{SDEP}, {lo+1}, s{SDEP}")
            A(f"    s_cmp_gt_i32 s52, {thr2}")
            A(f"    s_cselect_b32 s{SDEP}, {hi}, s{SDEP}")

    nit, rem = divmod(BPM, N)
    A("    s_mov_b32 s54, 0")
    def phase(isK, start):
        nm = "k" if isK else "v"
        A(f"    s_mov_b32 s{SIT}, 0")
        A(f"L_{nm}loop:")
        for u in range(N):
            step((start + u) % N, isK, ctl and u == 0 and (ctlk or not isK))
        stamp(True)
        A(f"    s_add_u32 s{SIT}, s{SIT}, 1")
        A(f"    s_cmp_lt_u32 s{SIT}, {nit}")
        A(f"    s_cbranch_scc1 L_{nm}loop")
        for u in range(rem):
            step((start + u) % N, isK, False)
        return (start + rem) % N

    st = phase(True, 0)
    A("    s_nop 7")
    for i in range(4):
        for p in range(4):
            A(f"    v_cvt_pk_bf16_f32 v{X+4*i+p}, v{ACC+4*(2*p)+i}, v{ACC+4*(2*p+1)+i}")
    A("    s_mov_b32 s60, 0x3db504f3")
    A("    s_mov_b32 s61, 0xffff0000")
    A("    s_mov_b32 s62, 0x3fb8aa3b")
    for i in range(4):
        A(f"    ds_read_b128 v[{Q+4*i}:{Q+4*i+3}], v{VLDS_Q} offset:{16*i}")
    for i in range(4):
        A(f"    ds_read_b128 v[{ACC+4*i}:{ACC+4*i+3}], v{VLDS_Q} offset:{4096+16*i}")
    S0, S1 = ACC + 16, ACC + 20
    U0, U1 = ACC + 24, ACC + 28
    A(f"    s_waitcnt lgkmcnt(4)")
    for i in range(4):
        c = "0" if i == 0 else f"v[{S0}:{S0+3}]"
        A(f"    v_mfma_f32_16x16x32_bf16 v[{S0}:{S0+3}], v[{X+4*i}:{X+4*i+3}], v[{Q+4*i}:{Q+4*i+3}], {c}")
    A(f"    s_waitcnt lgkmcnt(0)")
    for i in range(4):
        c = "0" if i == 0 else f"v[{S1}:{S1+3}]"
        A(f"    v_mfma_f32_16x16x32_bf16 v[{S1}:{S1+3}], v[{X+4*i}:{X+4*i+3}], v[{ACC+4*i}:{ACC+4*i+3}], {c}")
    A("    s_nop 7")
    for S, U, PP in ((S0, U0, P), (S1, U1, P + 2)):
        A(f"    v_cvt_pk_bf16_f32 v{U}, v{S}, v{S+1}")
        A(f"    v_cvt_pk_bf16_f32 v{U+1}, v{S+2}, v{S+3}")
        A(f"    v_lshlrev_b32 v{S}, 16, v{U}")
        A(f"    v_and_b32 v{S+1}, s61, v{U}")
        A(f"    v_lshlrev_b32 v{S+2}, 16, v{U+1}")
        A(f"    v_and_b32 v{S+3}, s61, v{U+1}")
        for i in range(4):
            A(f"    v_mul_f32 v{S+i}, s60, v{S+i}")
        A(f"    v_cvt_pk_bf16_f32 v{U}, v{S}, v{S+1}")
        A(f"    v_cvt_pk_bf16_f32 v{U+1}, v{S+2}, v{S+3}")
        A(f"    v_lshlrev_b32 v{S}, 16, v{U}")
        A(f"    v_and_b32 v{S+1}, s61, v{U}")
        A(f"    v_lshlrev_b32 v{S+2}, 16, v{U+1}")
        A(f"    v_and_b32 v{S+3}, s61, v{U+1}")
        M, M2 = U, U + 1
        A(f"    v_max_f32 v{M}, v{S}, v{S+1}")
        A(f"    v_max3_f32 v{M}, v{M}, v{S+2}, v{S+3}")
        def xreduce(op):
            A(f"    v_mov_b32 v{M2}, v{M}")
            A("    s_nop 1")
            A(f"    v_permlane16_swap_b32 v{M}, v{M2}")
            A(f"    {op} v{M}, v{M}, v{M2}")
            A(f"    v_mov_b32 v{M2}, v{M}")
            A("    s_nop 1")
            A(f"    v_permlane32_swap_b32 v{M}, v{M2}")
            A(f"    {op} v{M}, v{M}, v{M2}")
        xreduce("v_max_f32")
        for i in range(4):
            A(f"    v_sub_f32 v{S+i}, v{S+i}, v{M}")
        for i in range(4):
            A(f"    v_mul_f32 v{S+i}, s62, v{S+i}")
        for i in range(4):
            A(f"    v_exp_f32 v{S+i}, v{S+i}")
        A("    s_nop 0")
        A(f"    v_add_f32 v{M}, v{S}, v{S+1}")
        A(f"    v_add_f32 v{M2}, v{S+2}, v{S+3}")
        A(f"    v_add_f32 v{M}, v{M}, v{M2}")
        xreduce("v_add_f32")
        A(f"    v_rcp_f32 v{M}, v{M}")
        A("    s_nop 0")
        for i in range(4):
            A(f"    v_mul_f32 v{S+i}, v{S+i}, v{M}")
        A(f"    v_cvt_pk_bf16_f32 v{PP}, v{S}, v{S+1}")
        A(f"    v_cvt_pk_bf16_f32 v{PP+1}, v{S+2}, v{S+3}")
    for i in range(32):
        A(f"    v_mov_b32 v{ACC+i}, 0")
    st = phase(False, st)
    A("    s_nop 7")
    for e in range(8):
        a = ACC + 4 * e
        A(f"    v_cvt_pk_bf16_f32 v{X+2*e}, v{a}, v{a+1}")
        A(f"    v_cvt_pk_bf16_f32 v{X+2*e+1}, v{a+2}, v{a+3}")
    A("    s_waitcnt vmcnt(0)")
    O0, O1 = ACC, BUF0
    for e in range(8):
        o = O0 + 4 * e
        A(f"    v_mfma_f32_16x16x16_bf16 v[{o}:{o+3}], v[{P}:{P+1}], v[{X+2*e}:{X+2*e+1}], 0")
    for e in range(8):
        o = O1 + 4 * e
        A(f"    v_mfma_f32_16x16x16_bf16 v[{o}:{o+3}], v[{P+2}:{P+3}], v[{X+2*e}:{X+2*e+1}], 0")
    R = BUF0 + 32
    for tl, O in ((0, O0), (1, O1)):
        if tl == 1:
            A("    s_nop 3")
        for i in range(4):
            r = R + 16 * tl + 4 * i
            for p in range(4):
                A(f"    v_cvt_pk_bf16_f32 v{r+p}, v{O+4*(2*p)+i}, v{O+4*(2*p+1)+i}")
            if tl == 0:
                A(f"    buffer_store_dwordx4 v[{r}:{r+3}], v{VOFF_O}, s[{SO}:{SO+3}], 0 offen offset:{256*i}{of}")
            else:
                A(f"    buffer_store_dwordx4 v[{r}:{r+3}], v{VOFF_O}, s[{SO}:{SO+3}], s49 offen offset:{256*i}{of}")
    if ts:
        stamp()
        A("    s_getreg_b32 s60, hwreg(HW_REG_XCC_ID)")
        A("    s_getreg_b32 s61, hwreg(HW_REG_HW_ID)")
        A(f"    v_writelane_b32 v{VTS}, s60, 62")
        A(f"    v_writelane_b32 v{VTS}, s61, 63")
        A(f"    s_lshl_b32 s62, s2, 8")
        A("    s_add_u32 s58, s58, s62")
        A("    s_addc_u32 s59, s59, 0")
        A("    v_lshlrev_b32 v16, 2, v0")
        A(f"    global_store_dword v16, v{VTS}, s[58:59]")
    A("L_end:")
    A("    s_endpgm")
    A('.section .rodata,"a"')
    A(".p2align 6")
    A(f".amdhsa_kernel {NAME}_kernel")
    nv = nvf if nvf else NV
    assert nv >= NV
    A(f"  .amdhsa_next_free_vgpr {nv}")
    A("  .amdhsa_next_free_sgpr 72")
    A(f"  .amdhsa_accum_offset {min(256,(nv+3)//4*4)}")
    A("  .amdhsa_group_segment_fixed_size 0")
    A("  .amdhsa_kernarg_size 64")
    A("  .amdhsa_user_sgpr_count 2")
    A("  .amdhsa_user_sgpr_kernarg_segment_ptr 1")
    A("  .amdhsa_system_sgpr_workgroup_id_x 1")
    A(".end_amdhsa_kernel")
    return "\n".join(L) + "\n"


if __name__ == "__main__":
    ap = argparse.ArgumentParser()
    ap.add_argument("--lo", type=int, default=3)
    ap.add_argument("--hi", type=int, default=3)
    ap.add_argument("--flags", default="nt")
    ap.add_argument("--eflags", default="")
    ap.add_argument("--qflags", default="nt")
    ap.add_argument("--oflags", default="nt")
    ap.add_argument("--pflags", default="sc0 sc1")
    ap.add_argument("--sflags", default="sc0 sc1")
    ap.add_argument("--rdiv", type=int, default=2)
    ap.add_argument("--tpb", type=int, default=5625)
    for k in ["ts", "rot", "noe", "nvf", "ctl", "thr", "ctlk", "thr2", "nopoll", "norep", "noclk"]:
        ap.add_argument("--" + k, type=int, default=0)
    ap.add_argument("--ldsx", type=int, default=65536)
    ap.add_argument("--tsdiv", type=int, default=2)
    ap.add_argument("--cdiv", type=int, default=2)
    ap.add_argument("--nrep", type=int, default=16)
    ap.add_argument("-o", default="-")
    a = vars(ap.parse_args())
    o = a.pop("o")
    s = gen(**a)
    if o == "-":
        sys.stdout.write(s)
    else:
        open(o, "w").write(s)
```

```python
import sys, argparse, math

NAME = "standalone__low_rank_proj_linformer__sampling"
HEADER = open('cdna_kernels/' + NAME + '.s.ref').read().split('; @launch')[0]


def gen(lo=3, hi=3, flags='nt', eflags='', qflags='nt', oflags='nt', ts=0, tsdiv=2, rot=0, noe=0, ldsx=65536, nvf=0,
        ctl=0, cdiv=2, nrep=16, thr=0, ctlk=0, rdiv=2, tpb=5625, thr2=0, pflags='sc0 sc1', sflags='sc0 sc1', nopoll=0, norep=0, noclk=0, vflags=None, swapkv=0):
    L = []
    A = L.append
    N = hi
    BPM = 128
    lds = max(8192, ldsx)
    A(HEADER + f"; @launch grid=(512,1,1) block=(64,1,1) lds={lds}")
    A('.amdgcn_target "amdgcn-amd-amdhsa--gfx950"')
    A(".text")
    A(f".globl {NAME}_kernel")
    A(".p2align 8")
    A(f".type {NAME}_kernel,@function")
    A(f"{NAME}_kernel:")
    VOFF_D, VOFF_E, VLDS_Q, VOFF_O, VTS, VPRG, VPOFF = 1, 2, 3, 4, 5, 6, 7
    VREP = 83
    ACC = 8
    T = [40, 44]
    P = 48
    X = 52
    Q = 68
    BUF0 = 84
    def bufd(b, i): return BUF0 + 36 * b + 4 * i
    def bufe(b): return BUF0 + 36 * b + 32
    NV = max(BUF0 + 36 * N, BUF0 + 64)
    assert NV <= 256, NV
    SD, SP, SQ, SO, SG = 16, 20, 24, 28, 32
    SVB, SFB = 36, 38
    SSEL0, SSEL1, SIT, SDOFF, SEOFF, SF_, SDEP, SCNT, STS = 40, 41, 42, 43, 44, 45, 46, 47, 63
    ntf = (" " + flags) if flags else ""
    entf = (" " + eflags) if eflags else ""
    qf = (" " + qflags) if qflags else ""
    of = (" " + oflags) if oflags else ""
    uid = [0]
    def lab(p):
        uid[0] += 1
        return f"L_{p}{uid[0]}"

    def stamp(inloop=False):
        if not ts:
            return
        lbl = lab("ts")
        if inloop and tsdiv > 1:
            A(f"    s_and_b32 s52, s{SIT}, {tsdiv-1}")
            A(f"    s_cmp_lg_u32 s52, {tsdiv-1}")
            A(f"    s_cbranch_scc1 {lbl}")
        A("    s_memrealtime s[50:51]")
        A(f"    s_mov_b32 m0, s{STS}")
        A("    s_waitcnt lgkmcnt(0)")
        A(f"    v_writelane_b32 v{VTS}, s50, m0")
        A(f"    s_add_u32 s{STS}, s{STS}, 1")
        A(f"{lbl}:")

    A("    s_cmp_ge_u32 s2, 512")
    A("    s_cbranch_scc1 L_end")
    if ts:
        A(f"    s_mov_b32 s{STS}, 0")
        A(f"    v_mov_b32 v{VTS}, 0")
        stamp()
    A("    s_load_dwordx8 s[4:11], s[0:1], 0")
    A("    s_load_dwordx4 s[12:15], s[0:1], 32")
    A("    s_load_dwordx4 s[56:59], s[0:1], 48")
    A("    v_and_b32 v9, 15, v0")
    A("    v_lshrrev_b32 v10, 4, v0")
    A(f"    v_lshlrev_b32 v{VOFF_D}, 11, v10")
    A(f"    v_lshl_add_u32 v{VOFF_D}, v9, 4, v{VOFF_D}")
    A(f"    v_lshlrev_b32 v{VOFF_E}, 13, v9")
    A(f"    v_lshl_add_u32 v{VOFF_E}, v10, 4, v{VOFF_E}")
    A("    s_lshl_b32 s3, s2, 20")
    A("    s_lshl_b32 s48, s2, 13")
    A(f"    s_mov_b32 s{SD+2}, 0x100000")
    A(f"    s_mov_b32 s{SD+3}, 0x20000")
    A(f"    s_mov_b32 s{SP+2}, 0x20000")
    A(f"    s_mov_b32 s{SP+3}, 0x20000")
    if rot:
        A("    s_lshr_b32 s49, s2, 3")
        A(f"    s_mul_i32 s49, s49, {rot}")
        A(f"    s_and_b32 s49, s49, {BPM-1}")
        A(f"    s_lshl_b32 s{SDOFF}, s49, 13")
        A(f"    s_lshl_b32 s{SEOFF}, s49, 6")
    else:
        A(f"    s_mov_b32 s{SDOFF}, 0")
        A(f"    s_mov_b32 s{SEOFF}, 0")
    A(f"    s_mov_b32 s{SCNT}, 0")
    A("    s_waitcnt lgkmcnt(0)")
    if swapkv:
        A("    s_mov_b64 s[60:61], s[6:7]")
        A("    s_mov_b64 s[6:7], s[8:9]")
        A("    s_mov_b64 s[8:9], s[60:61]")
    A(f"    s_add_u32 s{SD}, s6, s3")
    A(f"    s_addc_u32 s{SD+1}, s7, 0")
    A(f"    s_mov_b32 s{SP}, s10")
    A(f"    s_mov_b32 s{SP+1}, s11")

    PER = 8 if noe else 9
    def loads(b, check=True):
        fl = ntf
        if check == 'V' and vflags is not None:
            fl = (" " + vflags) if vflags else ""
        for i in range(8):
            r = bufd(b, i)
            off = f" offset:{i*256}" if i else ""
            A(f"    buffer_load_dwordx4 v[{r}:{r+3}], v{VOFF_D}, s[{SD}:{SD+3}], s{SDOFF} offen{off}{fl}")
        if not noe:
            A(f"    buffer_load_dwordx4 v[{bufe(b)}:{bufe(b)+3}], v{VOFF_E}, s[{SP}:{SP+3}], s{SEOFF} offen{entf}")
        A(f"    s_add_u32 s{SDOFF}, s{SDOFF}, 0x2000")
        A(f"    s_add_u32 s{SEOFF}, s{SEOFF}, 64")
        A(f"    s_and_b32 s{SDOFF}, s{SDOFF}, 0xfffff")
        A(f"    s_and_b32 s{SEOFF}, s{SEOFF}, 0x1fff")
        A(f"    s_add_u32 s{SCNT}, s{SCNT}, 1")
        if check == 'K':
            A(f"    s_cmp_eq_u32 s{SCNT}, 128")
            A(f"    s_cselect_b64 s[{SD}:{SD+1}], s[{SVB}:{SVB+1}], s[{SD}:{SD+1}]")
            A(f"    s_cselect_b64 s[{SP}:{SP+1}], s[{SFB}:{SFB+1}], s[{SP}:{SP+1}]")
        elif check == 'V':
            A(f"    s_cmp_eq_u32 s{SCNT}, 256")
            A(f"    s_cselect_b32 s{SD+2}, 0, s{SD+2}")
            A(f"    s_cselect_b32 s{SP+2}, 0, s{SP+2}")

    def perms(b, e):
        w, h = e >> 1, e & 1
        t = T[e & 1]
        sel = SSEL1 if h else SSEL0
        for q in range(4):
            lo_ = bufd(b, 2 * q) + w
            hi_ = bufd(b, 2 * q + 1) + w
            A(f"    v_perm_b32 v{t+q}, v{hi_}, v{lo_}, s{sel}")

    def mfma(b, e, isK):
        t = T[e & 1]
        a = ACC + 4 * e
        eb = bufe(b)
        if isK:
            A(f"    v_mfma_f32_16x16x32_bf16 v[{a}:{a+3}], v[{t}:{t+3}], v[{eb}:{eb+3}], v[{a}:{a+3}]")
        else:
            A(f"    v_mfma_f32_16x16x32_bf16 v[{a}:{a+3}], v[{eb}:{eb+3}], v[{t}:{t+3}], v[{a}:{a+3}]")

    def compute(b, isK):
        perms(b, 0)
        for e in range(8):
            if e < 7:
                perms(b, e + 1)
            else:
                A("    s_nop 1")
            mfma(b, e, isK)

    d0 = lo
    for b in range(d0):
        loads(b, check=None)
    A(f"    s_add_u32 s{SQ}, s4, s48")
    A(f"    s_addc_u32 s{SQ+1}, s5, 0")
    A(f"    s_mov_b32 s{SQ+2}, 0x2000")
    A(f"    s_mov_b32 s{SQ+3}, 0x20000")
    A("    s_mov_b32 m0, 0")
    A(f"    v_lshlrev_b32 v11, 4, v0")
    for j in range(4):
        off = f" offset:{j*1024}" if j else ""
        A(f"    buffer_load_dwordx4 v11, s[{SQ}:{SQ+3}], 0 offen{off}{qf} lds")
    A("    s_movk_i32 s49, 0x1000")
    A("    s_mov_b32 m0, s49")
    A("    s_nop 0")
    for j in range(4):
        off = f" offset:{j*1024}" if j else ""
        A(f"    buffer_load_dwordx4 v11, s[{SQ}:{SQ+3}], s49 offen{off}{qf} lds")
    A(f"    s_add_u32 s{SVB}, s8, s3")
    A(f"    s_addc_u32 s{SVB+1}, s9, 0")
    A(f"    s_mov_b32 s{SFB}, s12")
    A(f"    s_mov_b32 s{SFB+1}, s13")
    A(f"    s_add_u32 s{SO}, s14, s48")
    A(f"    s_addc_u32 s{SO+1}, s15, 0")
    A(f"    s_mov_b32 s{SO+2}, 0x2000")
    A(f"    s_mov_b32 s{SO+3}, 0x20000")
    A(f"    s_mov_b32 s{SG}, s56")
    A(f"    s_mov_b32 s{SG+1}, s57")
    A(f"    s_mov_b32 s{SG+2}, {nrep*4}")
    A(f"    s_mov_b32 s{SG+3}, 0x20000")
    A(f"    s_mov_b32 s{SSEL0}, 0x05040100")
    A(f"    s_mov_b32 s{SSEL1}, 0x07060302")
    A(f"    v_lshlrev_b32 v{VLDS_Q}, 8, v9")
    A(f"    v_lshl_add_u32 v{VLDS_Q}, v10, 6, v{VLDS_Q}")
    A(f"    v_lshlrev_b32 v{VOFF_O}, 10, v10")
    A(f"    v_lshl_add_u32 v{VOFF_O}, v9, 4, v{VOFF_O}")
    A(f"    v_lshlrev_b32 v{VPOFF}, 2, v0")
    A(f"    v_mov_b32 v{VPRG}, 0")
    for i in range(32):
        A(f"    v_mov_b32 v{ACC+i}, 0")
    if noe:
        for b in range(N):
            for i in range(4):
                A(f"    v_mov_b32 v{bufe(b)+i}, 0x3c003c00")
    A(f"    s_mov_b32 s{SF_}, {d0}")
    A(f"    s_mov_b32 s{SDEP}, {d0}")

    def step(j, isK, ctl_here):
        chk = 'K' if isK else 'V'
        if lo == hi:
            A(f"    s_waitcnt vmcnt({PER*(lo-1)})")
        else:
            done = lab("w")
            for f in range(hi, lo, -1):
                nx = lab("w")
                A(f"    s_cmp_lg_u32 s{SF_}, {f}")
                A(f"    s_cbranch_scc1 {nx}")
                A(f"    s_waitcnt vmcnt({PER*(f-1)})")
                A(f"    s_branch {done}")
                A(f"{nx}:")
            A(f"    s_waitcnt vmcnt({PER*(lo-1)})")
            A(f"{done}:")
        if ctl_here:
            control(isK)
        compute(j, isK)
        if lo == hi:
            loads((j + lo) % N, chk)
        else:
            for k in range(lo, hi + 1):
                skip = lab("s")
                if k < hi:
                    A(f"    s_cmp_gt_u32 s{SF_}, {k}")
                    A(f"    s_cbranch_scc1 {skip}")
                if k > lo:
                    A(f"    s_cmp_lt_u32 s{SDEP}, {k}")
                    A(f"    s_cbranch_scc1 {skip}")
                loads((j + k) % N, chk)
                A(f"{skip}:")
            A(f"    s_sub_u32 s{SF_}, s{SF_}, 1")
            A(f"    s_max_u32 s{SF_}, s{SF_}, s{SDEP}")

    def control(isK):
        assert nrep == 16
        tp = int(round(tpb * 128 / 100))
        if not noclk:
            A("    s_memrealtime s[64:65]")
        A(f"    s_sub_u32 s55, s{SCNT}, s{SF_}")
        A(f"    s_mul_i32 s55, s55, {tp}")
        A(f"    s_lshr_b32 s55, s55, 7")
        A("    s_waitcnt lgkmcnt(0)")
        A("    s_sub_u32 s55, s64, s55")
        A("    s_or_b32 s55, s55, 1")
        skip = lab("c")
        A(f"    s_and_b32 s52, s{SIT}, {cdiv-1}")
        A(f"    s_cmp_lg_u32 s52, 1")
        A(f"    s_cbranch_scc1 {skip}")
        A(f"    v_cmp_ne_u32 vcc, 0, v{VPRG}")
        A(f"    v_subrev_u32 v{VPRG}, s55, v{VPRG}")
        A(f"    v_cndmask_b32 v{VPRG}, 0, v{VPRG}, vcc")
        A("    s_nop 1")
        for sh in (8, 4, 2, 1):
            A(f"    v_add_u32_dpp v{VPRG}, v{VPRG}, v{VPRG} row_shr:{sh} row_mask:0xf bank_mask:0xf")
            A("    s_nop 1")
        A(f"    v_readlane_b32 s53, v{VPRG}, 15")
        A("    s_nop 0")
        A("    s_ashr_i32 s53, s53, 4")
        A("    s_add_u32 s54, s55, s53")
        A(f"{skip}:")
        skip = lab("c")
        A(f"    s_and_b32 s52, s{SIT}, {cdiv-1}")
        A(f"    s_cmp_lg_u32 s52, 0")
        A(f"    s_cbranch_scc1 {skip}")
        if not nopoll:
            A(f"    buffer_load_dword v{VPRG}, v{VPOFF}, s[{SG}:{SG+3}], 0 offen {pflags}")
        A(f"{skip}:")
        nr = lab("c")
        A(f"    s_cmp_ge_u32 s2, {nrep}")
        A(f"    s_cbranch_scc1 {nr}")
        A(f"    s_and_b32 s52, s{SIT}, {rdiv-1}")
        A(f"    s_cmp_lg_u32 s52, 0")
        A(f"    s_cbranch_scc1 {nr}")
        A(f"    v_mov_b32 v{VREP}, s55")
        A(f"    s_lshl_b32 s52, s2, 2")
        A(f"    s_mov_b64 exec, 1")
        if not norep:
            A(f"    buffer_store_dword v{VREP}, off, s[{SG}:{SG+3}], s52 {sflags}")
        A(f"    s_mov_b64 exec, -1")
        A(f"{nr}:")
        A("    s_sub_u32 s52, s55, s54")
        A("    s_cmp_eq_u32 s54, 0")
        A("    s_cselect_b32 s52, 0x80000000, s52")
        A(f"    s_mov_b32 s{SDEP}, {lo}")
        if hi - lo == 1:
            A(f"    s_cmp_gt_i32 s52, {thr}")
            A(f"    s_cselect_b32 s{SDEP}, {hi}, s{SDEP}")
        else:
            A(f"    s_cmp_gt_i32 s52, {thr}")
            A(f"    s_cselect_b32 s{SDEP}, {lo+1}, s{SDEP}")
            A(f"    s_cmp_gt_i32 s52, {thr2}")
            A(f"    s_cselect_b32 s{SDEP}, {hi}, s{SDEP}")

    nit, rem = divmod(BPM, N)
    A("    s_mov_b32 s54, 0")
    def phase(isK, start):
        nm = "k" if isK else "v"
        A(f"    s_mov_b32 s{SIT}, 0")
        A(f"L_{nm}loop:")
        for u in range(N):
            step((start + u) % N, isK, ctl and u == 0 and (ctlk or not isK))
        stamp(True)
        A(f"    s_add_u32 s{SIT}, s{SIT}, 1")
        A(f"    s_cmp_lt_u32 s{SIT}, {nit}")
        A(f"    s_cbranch_scc1 L_{nm}loop")
        for u in range(rem):
            step((start + u) % N, isK, False)
        return (start + rem) % N

    st = phase(True, 0)
    A("    s_nop 7")
    for i in range(4):
        for p in range(4):
            A(f"    v_cvt_pk_bf16_f32 v{X+4*i+p}, v{ACC+4*(2*p)+i}, v{ACC+4*(2*p+1)+i}")
    A("    s_mov_b32 s60, 0x3db504f3")
    A("    s_mov_b32 s61, 0xffff0000")
    A("    s_mov_b32 s62, 0x3fb8aa3b")
    for i in range(4):
        A(f"    ds_read_b128 v[{Q+4*i}:{Q+4*i+3}], v{VLDS_Q} offset:{16*i}")
    for i in range(4):
        A(f"    ds_read_b128 v[{ACC+4*i}:{ACC+4*i+3}], v{VLDS_Q} offset:{4096+16*i}")
    S0, S1 = ACC + 16, ACC + 20
    U0, U1 = ACC + 24, ACC + 28
    A(f"    s_waitcnt lgkmcnt(4)")
    for i in range(4):
        c = "0" if i == 0 else f"v[{S0}:{S0+3}]"
        A(f"    v_mfma_f32_16x16x32_bf16 v[{S0}:{S0+3}], v[{X+4*i}:{X+4*i+3}], v[{Q+4*i}:{Q+4*i+3}], {c}")
    A(f"    s_waitcnt lgkmcnt(0)")
    for i in range(4):
        c = "0" if i == 0 else f"v[{S1}:{S1+3}]"
        A(f"    v_mfma_f32_16x16x32_bf16 v[{S1}:{S1+3}], v[{X+4*i}:{X+4*i+3}], v[{ACC+4*i}:{ACC+4*i+3}], {c}")
    A("    s_nop 7")
    for S, U, PP in ((S0, U0, P), (S1, U1, P + 2)):
        A(f"    v_cvt_pk_bf16_f32 v{U}, v{S}, v{S+1}")
        A(f"    v_cvt_pk_bf16_f32 v{U+1}, v{S+2}, v{S+3}")
        A(f"    v_lshlrev_b32 v{S}, 16, v{U}")
        A(f"    v_and_b32 v{S+1}, s61, v{U}")
        A(f"    v_lshlrev_b32 v{S+2}, 16, v{U+1}")
        A(f"    v_and_b32 v{S+3}, s61, v{U+1}")
        for i in range(4):
            A(f"    v_mul_f32 v{S+i}, s60, v{S+i}")
        A(f"    v_cvt_pk_bf16_f32 v{U}, v{S}, v{S+1}")
        A(f"    v_cvt_pk_bf16_f32 v{U+1}, v{S+2}, v{S+3}")
        A(f"    v_lshlrev_b32 v{S}, 16, v{U}")
        A(f"    v_and_b32 v{S+1}, s61, v{U}")
        A(f"    v_lshlrev_b32 v{S+2}, 16, v{U+1}")
        A(f"    v_and_b32 v{S+3}, s61, v{U+1}")
        M, M2 = U, U + 1
        A(f"    v_max_f32 v{M}, v{S}, v{S+1}")
        A(f"    v_max3_f32 v{M}, v{M}, v{S+2}, v{S+3}")
        def xreduce(op):
            A(f"    v_mov_b32 v{M2}, v{M}")
            A("    s_nop 1")
            A(f"    v_permlane16_swap_b32 v{M}, v{M2}")
            A(f"    {op} v{M}, v{M}, v{M2}")
            A(f"    v_mov_b32 v{M2}, v{M}")
            A("    s_nop 1")
            A(f"    v_permlane32_swap_b32 v{M}, v{M2}")
            A(f"    {op} v{M}, v{M}, v{M2}")
        xreduce("v_max_f32")
        for i in range(4):
            A(f"    v_sub_f32 v{S+i}, v{S+i}, v{M}")
        for i in range(4):
            A(f"    v_mul_f32 v{S+i}, s62, v{S+i}")
        for i in range(4):
            A(f"    v_exp_f32 v{S+i}, v{S+i}")
        A("    s_nop 0")
        A(f"    v_add_f32 v{M}, v{S}, v{S+1}")
        A(f"    v_add_f32 v{M2}, v{S+2}, v{S+3}")
        A(f"    v_add_f32 v{M}, v{M}, v{M2}")
        xreduce("v_add_f32")
        A(f"    v_rcp_f32 v{M}, v{M}")
        A("    s_nop 0")
        for i in range(4):
            A(f"    v_mul_f32 v{S+i}, v{S+i}, v{M}")
        A(f"    v_cvt_pk_bf16_f32 v{PP}, v{S}, v{S+1}")
        A(f"    v_cvt_pk_bf16_f32 v{PP+1}, v{S+2}, v{S+3}")
    for i in range(32):
        A(f"    v_mov_b32 v{ACC+i}, 0")
    st = phase(False, st)
    A("    s_nop 7")
    for e in range(8):
        a = ACC + 4 * e
        A(f"    v_cvt_pk_bf16_f32 v{X+2*e}, v{a}, v{a+1}")
        A(f"    v_cvt_pk_bf16_f32 v{X+2*e+1}, v{a+2}, v{a+3}")
    A("    s_waitcnt vmcnt(0)")
    O0, O1 = ACC, BUF0
    for e in range(8):
        o = O0 + 4 * e
        A(f"    v_mfma_f32_16x16x16_bf16 v[{o}:{o+3}], v[{P}:{P+1}], v[{X+2*e}:{X+2*e+1}], 0")
    for e in range(8):
        o = O1 + 4 * e
        A(f"    v_mfma_f32_16x16x16_bf16 v[{o}:{o+3}], v[{P+2}:{P+3}], v[{X+2*e}:{X+2*e+1}], 0")
    R = BUF0 + 32
    for tl, O in ((0, O0), (1, O1)):
        if tl == 1:
            A("    s_nop 3")
        for i in range(4):
            r = R + 16 * tl + 4 * i
            for p in range(4):
                A(f"    v_cvt_pk_bf16_f32 v{r+p}, v{O+4*(2*p)+i}, v{O+4*(2*p+1)+i}")
            if tl == 0:
                A(f"    buffer_store_dwordx4 v[{r}:{r+3}], v{VOFF_O}, s[{SO}:{SO+3}], 0 offen offset:{256*i}{of}")
            else:
                A(f"    buffer_store_dwordx4 v[{r}:{r+3}], v{VOFF_O}, s[{SO}:{SO+3}], s49 offen offset:{256*i}{of}")
    if ts:
        stamp()
        A("    s_getreg_b32 s60, hwreg(HW_REG_XCC_ID)")
        A("    s_getreg_b32 s61, hwreg(HW_REG_HW_ID)")
        A(f"    v_writelane_b32 v{VTS}, s60, 62")
        A(f"    v_writelane_b32 v{VTS}, s61, 63")
        A(f"    s_lshl_b32 s62, s2, 8")
        A("    s_add_u32 s58, s58, s62")
        A("    s_addc_u32 s59, s59, 0")
        A("    v_lshlrev_b32 v16, 2, v0")
        A(f"    global_store_dword v16, v{VTS}, s[58:59]")
    A("L_end:")
    A("    s_endpgm")
    A('.section .rodata,"a"')
    A(".p2align 6")
    A(f".amdhsa_kernel {NAME}_kernel")
    nv = nvf if nvf else NV
    assert nv >= NV
    A(f"  .amdhsa_next_free_vgpr {nv}")
    A("  .amdhsa_next_free_sgpr 72")
    A(f"  .amdhsa_accum_offset {min(256,(nv+3)//4*4)}")
    A("  .amdhsa_group_segment_fixed_size 0")
    A("  .amdhsa_kernarg_size 64")
    A("  .amdhsa_user_sgpr_count 2")
    A("  .amdhsa_user_sgpr_kernarg_segment_ptr 1")
    A("  .amdhsa_system_sgpr_workgroup_id_x 1")
    A(".end_amdhsa_kernel")
    return "\n".join(L) + "\n"


if __name__ == "__main__":
    ap = argparse.ArgumentParser()
    ap.add_argument("--lo", type=int, default=3)
    ap.add_argument("--hi", type=int, default=3)
    ap.add_argument("--flags", default="nt")
    ap.add_argument("--eflags", default="")
    ap.add_argument("--qflags", default="nt")
    ap.add_argument("--oflags", default="nt")
    ap.add_argument("--pflags", default="sc0 sc1")
    ap.add_argument("--vflags", default=None)
    ap.add_argument("--sflags", default="sc0 sc1")
    ap.add_argument("--rdiv", type=int, default=2)
    ap.add_argument("--tpb", type=int, default=5625)
    for k in ["ts", "rot", "noe", "nvf", "ctl", "thr", "ctlk", "thr2", "nopoll", "norep", "noclk", "swapkv"]:
        ap.add_argument("--" + k, type=int, default=0)
    ap.add_argument("--ldsx", type=int, default=65536)
    ap.add_argument("--tsdiv", type=int, default=2)
    ap.add_argument("--cdiv", type=int, default=2)
    ap.add_argument("--nrep", type=int, default=16)
    ap.add_argument("-o", default="-")
    a = vars(ap.parse_args())
    o = a.pop("o")
    s = gen(**a)
    if o == "-":
        sys.stdout.write(s)
    else:
        open(o, "w").write(s)
```

```python
import sys, argparse, math

NAME = "standalone__low_rank_proj_linformer__sampling"
HEADER = open('cdna_kernels/' + NAME + '.s.ref').read().split('; @launch')[0]


def gen(lo=3, hi=3, flags='nt', eflags='', qflags='nt', oflags='nt', ts=0, tsdiv=2, rot=0, noe=0, ldsx=65536, nvf=0,
        ctl=0, cdiv=2, nrep=16, thr=0, ctlk=0, rdiv=2, tpb=5625, thr2=0, pflags='sc0 sc1', sflags='sc0 sc1', nopoll=0, norep=0, noclk=0, vflags=None, swapkv=0, dbgts=0):
    L = []
    A = L.append
    N = hi
    BPM = 128
    lds = max(8192, ldsx)
    A(HEADER + f"; @launch grid=(512,1,1) block=(64,1,1) lds={lds}")
    A('.amdgcn_target "amdgcn-amd-amdhsa--gfx950"')
    A(".text")
    A(f".globl {NAME}_kernel")
    A(".p2align 8")
    A(f".type {NAME}_kernel,@function")
    A(f"{NAME}_kernel:")
    VOFF_D, VOFF_E, VLDS_Q, VOFF_O, VTS, VPRG, VPOFF = 1, 2, 3, 4, 5, 6, 7
    VREP = 83
    ACC = 8
    T = [40, 44]
    P = 48
    X = 52
    Q = 68
    BUF0 = 84
    def bufd(b, i): return BUF0 + 36 * b + 4 * i
    def bufe(b): return BUF0 + 36 * b + 32
    NV = max(BUF0 + 36 * N, BUF0 + 64)
    assert NV <= 256, NV
    SD, SP, SQ, SO, SG = 16, 20, 24, 28, 32
    SVB, SFB = 36, 38
    SSEL0, SSEL1, SIT, SDOFF, SEOFF, SF_, SDEP, SCNT, STS = 40, 41, 42, 43, 44, 45, 46, 47, 63
    ntf = (" " + flags) if flags else ""
    entf = (" " + eflags) if eflags else ""
    qf = (" " + qflags) if qflags else ""
    of = (" " + oflags) if oflags else ""
    uid = [0]
    def lab(p):
        uid[0] += 1
        return f"L_{p}{uid[0]}"

    def stamp(inloop=False):
        if not ts:
            return
        lbl = lab("ts")
        if inloop and tsdiv > 1:
            A(f"    s_and_b32 s52, s{SIT}, {tsdiv-1}")
            A(f"    s_cmp_lg_u32 s52, {tsdiv-1}")
            A(f"    s_cbranch_scc1 {lbl}")
        A("    s_memrealtime s[50:51]")
        A(f"    s_mov_b32 m0, s{STS}")
        A("    s_waitcnt lgkmcnt(0)")
        A(f"    v_writelane_b32 v{VTS}, s50, m0")
        A(f"    s_add_u32 s{STS}, s{STS}, 1")
        A(f"{lbl}:")

    A("    s_cmp_ge_u32 s2, 512")
    A("    s_cbranch_scc1 L_end")
    if ts:
        A(f"    s_mov_b32 s{STS}, 0")
        A(f"    v_mov_b32 v{VTS}, 0")
        stamp()
    if dbgts:
        A("    s_memrealtime s[66:67]")
    A("    s_load_dwordx8 s[4:11], s[0:1], 0")
    A("    s_load_dwordx4 s[12:15], s[0:1], 32")
    A("    s_load_dwordx4 s[56:59], s[0:1], 48")
    A("    v_and_b32 v9, 15, v0")
    A("    v_lshrrev_b32 v10, 4, v0")
    A(f"    v_lshlrev_b32 v{VOFF_D}, 11, v10")
    A(f"    v_lshl_add_u32 v{VOFF_D}, v9, 4, v{VOFF_D}")
    A(f"    v_lshlrev_b32 v{VOFF_E}, 13, v9")
    A(f"    v_lshl_add_u32 v{VOFF_E}, v10, 4, v{VOFF_E}")
    A("    s_lshl_b32 s3, s2, 20")
    A("    s_lshl_b32 s48, s2, 13")
    A(f"    s_mov_b32 s{SD+2}, 0x100000")
    A(f"    s_mov_b32 s{SD+3}, 0x20000")
    A(f"    s_mov_b32 s{SP+2}, 0x20000")
    A(f"    s_mov_b32 s{SP+3}, 0x20000")
    if rot:
        A("    s_lshr_b32 s49, s2, 3")
        A(f"    s_mul_i32 s49, s49, {rot}")
        A(f"    s_and_b32 s49, s49, {BPM-1}")
        A(f"    s_lshl_b32 s{SDOFF}, s49, 13")
        A(f"    s_lshl_b32 s{SEOFF}, s49, 6")
    else:
        A(f"    s_mov_b32 s{SDOFF}, 0")
        A(f"    s_mov_b32 s{SEOFF}, 0")
    A(f"    s_mov_b32 s{SCNT}, 0")
    A("    s_waitcnt lgkmcnt(0)")
    if swapkv:
        A("    s_mov_b64 s[60:61], s[6:7]")
        A("    s_mov_b64 s[6:7], s[8:9]")
        A("    s_mov_b64 s[8:9], s[60:61]")
    A(f"    s_add_u32 s{SD}, s6, s3")
    A(f"    s_addc_u32 s{SD+1}, s7, 0")
    A(f"    s_mov_b32 s{SP}, s10")
    A(f"    s_mov_b32 s{SP+1}, s11")

    PER = 8 if noe else 9
    def loads(b, check=True):
        fl = ntf
        if check == 'V' and vflags is not None:
            fl = (" " + vflags) if vflags else ""
        for i in range(8):
            r = bufd(b, i)
            off = f" offset:{i*256}" if i else ""
            A(f"    buffer_load_dwordx4 v[{r}:{r+3}], v{VOFF_D}, s[{SD}:{SD+3}], s{SDOFF} offen{off}{fl}")
        if not noe:
            A(f"    buffer_load_dwordx4 v[{bufe(b)}:{bufe(b)+3}], v{VOFF_E}, s[{SP}:{SP+3}], s{SEOFF} offen{entf}")
        A(f"    s_add_u32 s{SDOFF}, s{SDOFF}, 0x2000")
        A(f"    s_add_u32 s{SEOFF}, s{SEOFF}, 64")
        A(f"    s_and_b32 s{SDOFF}, s{SDOFF}, 0xfffff")
        A(f"    s_and_b32 s{SEOFF}, s{SEOFF}, 0x1fff")
        A(f"    s_add_u32 s{SCNT}, s{SCNT}, 1")
        if check == 'K':
            A(f"    s_cmp_eq_u32 s{SCNT}, 128")
            A(f"    s_cselect_b64 s[{SD}:{SD+1}], s[{SVB}:{SVB+1}], s[{SD}:{SD+1}]")
            A(f"    s_cselect_b64 s[{SP}:{SP+1}], s[{SFB}:{SFB+1}], s[{SP}:{SP+1}]")
        elif check == 'V':
            A(f"    s_cmp_eq_u32 s{SCNT}, 256")
            A(f"    s_cselect_b32 s{SD+2}, 0, s{SD+2}")
            A(f"    s_cselect_b32 s{SP+2}, 0, s{SP+2}")

    def perms(b, e):
        w, h = e >> 1, e & 1
        t = T[e & 1]
        sel = SSEL1 if h else SSEL0
        for q in range(4):
            lo_ = bufd(b, 2 * q) + w
            hi_ = bufd(b, 2 * q + 1) + w
            A(f"    v_perm_b32 v{t+q}, v{hi_}, v{lo_}, s{sel}")

    def mfma(b, e, isK):
        t = T[e & 1]
        a = ACC + 4 * e
        eb = bufe(b)
        if isK:
            A(f"    v_mfma_f32_16x16x32_bf16 v[{a}:{a+3}], v[{t}:{t+3}], v[{eb}:{eb+3}], v[{a}:{a+3}]")
        else:
            A(f"    v_mfma_f32_16x16x32_bf16 v[{a}:{a+3}], v[{eb}:{eb+3}], v[{t}:{t+3}], v[{a}:{a+3}]")

    def compute(b, isK):
        perms(b, 0)
        for e in range(8):
            if e < 7:
                perms(b, e + 1)
            else:
                A("    s_nop 1")
            mfma(b, e, isK)

    d0 = lo
    for b in range(d0):
        loads(b, check=None)
    A(f"    s_add_u32 s{SQ}, s4, s48")
    A(f"    s_addc_u32 s{SQ+1}, s5, 0")
    A(f"    s_mov_b32 s{SQ+2}, 0x2000")
    A(f"    s_mov_b32 s{SQ+3}, 0x20000")
    A("    s_mov_b32 m0, 0")
    A(f"    v_lshlrev_b32 v11, 4, v0")
    for j in range(4):
        off = f" offset:{j*1024}" if j else ""
        A(f"    buffer_load_dwordx4 v11, s[{SQ}:{SQ+3}], 0 offen{off}{qf} lds")
    A("    s_movk_i32 s49, 0x1000")
    A("    s_mov_b32 m0, s49")
    A("    s_nop 0")
    for j in range(4):
        off = f" offset:{j*1024}" if j else ""
        A(f"    buffer_load_dwordx4 v11, s[{SQ}:{SQ+3}], s49 offen{off}{qf} lds")
    A(f"    s_add_u32 s{SVB}, s8, s3")
    A(f"    s_addc_u32 s{SVB+1}, s9, 0")
    A(f"    s_mov_b32 s{SFB}, s12")
    A(f"    s_mov_b32 s{SFB+1}, s13")
    A(f"    s_add_u32 s{SO}, s14, s48")
    A(f"    s_addc_u32 s{SO+1}, s15, 0")
    A(f"    s_mov_b32 s{SO+2}, 0x2000")
    A(f"    s_mov_b32 s{SO+3}, 0x20000")
    A(f"    s_mov_b32 s{SG}, s56")
    A(f"    s_mov_b32 s{SG+1}, s57")
    A(f"    s_mov_b32 s{SG+2}, {nrep*4}")
    A(f"    s_mov_b32 s{SG+3}, 0x20000")
    A(f"    s_mov_b32 s{SSEL0}, 0x05040100")
    A(f"    s_mov_b32 s{SSEL1}, 0x07060302")
    A(f"    v_lshlrev_b32 v{VLDS_Q}, 8, v9")
    A(f"    v_lshl_add_u32 v{VLDS_Q}, v10, 6, v{VLDS_Q}")
    A(f"    v_lshlrev_b32 v{VOFF_O}, 10, v10")
    A(f"    v_lshl_add_u32 v{VOFF_O}, v9, 4, v{VOFF_O}")
    A(f"    v_lshlrev_b32 v{VPOFF}, 2, v0")
    A(f"    v_mov_b32 v{VPRG}, 0")
    for i in range(32):
        A(f"    v_mov_b32 v{ACC+i}, 0")
    if noe:
        for b in range(N):
            for i in range(4):
                A(f"    v_mov_b32 v{bufe(b)+i}, 0x3c003c00")
    A(f"    s_mov_b32 s{SF_}, {d0}")
    A(f"    s_mov_b32 s{SDEP}, {d0}")

    def step(j, isK, ctl_here):
        chk = 'K' if isK else 'V'
        if lo == hi:
            A(f"    s_waitcnt vmcnt({PER*(lo-1)})")
        else:
            done = lab("w")
            for f in range(hi, lo, -1):
                nx = lab("w")
                A(f"    s_cmp_lg_u32 s{SF_}, {f}")
                A(f"    s_cbranch_scc1 {nx}")
                A(f"    s_waitcnt vmcnt({PER*(f-1)})")
                A(f"    s_branch {done}")
                A(f"{nx}:")
            A(f"    s_waitcnt vmcnt({PER*(lo-1)})")
            A(f"{done}:")
        if ctl_here:
            control(isK)
        compute(j, isK)
        if lo == hi:
            loads((j + lo) % N, chk)
        else:
            for k in range(lo, hi + 1):
                skip = lab("s")
                if k < hi:
                    A(f"    s_cmp_gt_u32 s{SF_}, {k}")
                    A(f"    s_cbranch_scc1 {skip}")
                if k > lo:
                    A(f"    s_cmp_lt_u32 s{SDEP}, {k}")
                    A(f"    s_cbranch_scc1 {skip}")
                loads((j + k) % N, chk)
                A(f"{skip}:")
            A(f"    s_sub_u32 s{SF_}, s{SF_}, 1")
            A(f"    s_max_u32 s{SF_}, s{SF_}, s{SDEP}")

    def control(isK):
        assert nrep == 16
        tp = int(round(tpb * 128 / 100))
        if not noclk:
            A("    s_memrealtime s[64:65]")
        A(f"    s_sub_u32 s55, s{SCNT}, s{SF_}")
        A(f"    s_mul_i32 s55, s55, {tp}")
        A(f"    s_lshr_b32 s55, s55, 7")
        A("    s_waitcnt lgkmcnt(0)")
        A("    s_sub_u32 s55, s64, s55")
        A("    s_or_b32 s55, s55, 1")
        skip = lab("c")
        A(f"    s_and_b32 s52, s{SIT}, {cdiv-1}")
        A(f"    s_cmp_lg_u32 s52, 1")
        A(f"    s_cbranch_scc1 {skip}")
        A(f"    v_cmp_ne_u32 vcc, 0, v{VPRG}")
        A(f"    v_subrev_u32 v{VPRG}, s55, v{VPRG}")
        A(f"    v_cndmask_b32 v{VPRG}, 0, v{VPRG}, vcc")
        A("    s_nop 1")
        for sh in (8, 4, 2, 1):
            A(f"    v_add_u32_dpp v{VPRG}, v{VPRG}, v{VPRG} row_shr:{sh} row_mask:0xf bank_mask:0xf")
            A("    s_nop 1")
        A(f"    v_readlane_b32 s53, v{VPRG}, 15")
        A("    s_nop 0")
        A("    s_ashr_i32 s53, s53, 4")
        A("    s_add_u32 s54, s55, s53")
        A(f"{skip}:")
        skip = lab("c")
        A(f"    s_and_b32 s52, s{SIT}, {cdiv-1}")
        A(f"    s_cmp_lg_u32 s52, 0")
        A(f"    s_cbranch_scc1 {skip}")
        if not nopoll:
            A(f"    buffer_load_dword v{VPRG}, v{VPOFF}, s[{SG}:{SG+3}], 0 offen {pflags}")
        A(f"{skip}:")
        nr = lab("c")
        A(f"    s_cmp_ge_u32 s2, {nrep}")
        A(f"    s_cbranch_scc1 {nr}")
        A(f"    s_and_b32 s52, s{SIT}, {rdiv-1}")
        A(f"    s_cmp_lg_u32 s52, 0")
        A(f"    s_cbranch_scc1 {nr}")
        A(f"    v_mov_b32 v{VREP}, s55")
        A(f"    s_lshl_b32 s52, s2, 2")
        A(f"    s_mov_b64 exec, 1")
        if not norep:
            A(f"    buffer_store_dword v{VREP}, off, s[{SG}:{SG+3}], s52 {sflags}")
        A(f"    s_mov_b64 exec, -1")
        A(f"{nr}:")
        A("    s_sub_u32 s52, s55, s54")
        A("    s_cmp_eq_u32 s54, 0")
        A("    s_cselect_b32 s52, 0x80000000, s52")
        A(f"    s_mov_b32 s{SDEP}, {lo}")
        if hi - lo == 1:
            A(f"    s_cmp_gt_i32 s52, {thr}")
            A(f"    s_cselect_b32 s{SDEP}, {hi}, s{SDEP}")
        else:
            A(f"    s_cmp_gt_i32 s52, {thr}")
            A(f"    s_cselect_b32 s{SDEP}, {lo+1}, s{SDEP}")
            A(f"    s_cmp_gt_i32 s52, {thr2}")
            A(f"    s_cselect_b32 s{SDEP}, {hi}, s{SDEP}")

    nit, rem = divmod(BPM, N)
    A("    s_mov_b32 s54, 0")
    def phase(isK, start):
        nm = "k" if isK else "v"
        A(f"    s_mov_b32 s{SIT}, 0")
        A(f"L_{nm}loop:")
        for u in range(N):
            step((start + u) % N, isK, ctl and u == 0 and (ctlk or not isK))
        stamp(True)
        A(f"    s_add_u32 s{SIT}, s{SIT}, 1")
        A(f"    s_cmp_lt_u32 s{SIT}, {nit}")
        A(f"    s_cbranch_scc1 L_{nm}loop")
        for u in range(rem):
            step((start + u) % N, isK, False)
        return (start + rem) % N

    st = phase(True, 0)
    A("    s_nop 7")
    for i in range(4):
        for p in range(4):
            A(f"    v_cvt_pk_bf16_f32 v{X+4*i+p}, v{ACC+4*(2*p)+i}, v{ACC+4*(2*p+1)+i}")
    A("    s_mov_b32 s60, 0x3db504f3")
    A("    s_mov_b32 s61, 0xffff0000")
    A("    s_mov_b32 s62, 0x3fb8aa3b")
    for i in range(4):
        A(f"    ds_read_b128 v[{Q+4*i}:{Q+4*i+3}], v{VLDS_Q} offset:{16*i}")
    for i in range(4):
        A(f"    ds_read_b128 v[{ACC+4*i}:{ACC+4*i+3}], v{VLDS_Q} offset:{4096+16*i}")
    S0, S1 = ACC + 16, ACC + 20
    U0, U1 = ACC + 24, ACC + 28
    A(f"    s_waitcnt lgkmcnt(4)")
    for i in range(4):
        c = "0" if i == 0 else f"v[{S0}:{S0+3}]"
        A(f"    v_mfma_f32_16x16x32_bf16 v[{S0}:{S0+3}], v[{X+4*i}:{X+4*i+3}], v[{Q+4*i}:{Q+4*i+3}], {c}")
    A(f"    s_waitcnt lgkmcnt(0)")
    for i in range(4):
        c = "0" if i == 0 else f"v[{S1}:{S1+3}]"
        A(f"    v_mfma_f32_16x16x32_bf16 v[{S1}:{S1+3}], v[{X+4*i}:{X+4*i+3}], v[{ACC+4*i}:{ACC+4*i+3}], {c}")
    A("    s_nop 7")
    for S, U, PP in ((S0, U0, P), (S1, U1, P + 2)):
        A(f"    v_cvt_pk_bf16_f32 v{U}, v{S}, v{S+1}")
        A(f"    v_cvt_pk_bf16_f32 v{U+1}, v{S+2}, v{S+3}")
        A(f"    v_lshlrev_b32 v{S}, 16, v{U}")
        A(f"    v_and_b32 v{S+1}, s61, v{U}")
        A(f"    v_lshlrev_b32 v{S+2}, 16, v{U+1}")
        A(f"    v_and_b32 v{S+3}, s61, v{U+1}")
        for i in range(4):
            A(f"    v_mul_f32 v{S+i}, s60, v{S+i}")
        A(f"    v_cvt_pk_bf16_f32 v{U}, v{S}, v{S+1}")
        A(f"    v_cvt_pk_bf16_f32 v{U+1}, v{S+2}, v{S+3}")
        A(f"    v_lshlrev_b32 v{S}, 16, v{U}")
        A(f"    v_and_b32 v{S+1}, s61, v{U}")
        A(f"    v_lshlrev_b32 v{S+2}, 16, v{U+1}")
        A(f"    v_and_b32 v{S+3}, s61, v{U+1}")
        M, M2 = U, U + 1
        A(f"    v_max_f32 v{M}, v{S}, v{S+1}")
        A(f"    v_max3_f32 v{M}, v{M}, v{S+2}, v{S+3}")
        def xreduce(op):
            A(f"    v_mov_b32 v{M2}, v{M}")
            A("    s_nop 1")
            A(f"    v_permlane16_swap_b32 v{M}, v{M2}")
            A(f"    {op} v{M}, v{M}, v{M2}")
            A(f"    v_mov_b32 v{M2}, v{M}")
            A("    s_nop 1")
            A(f"    v_permlane32_swap_b32 v{M}, v{M2}")
            A(f"    {op} v{M}, v{M}, v{M2}")
        xreduce("v_max_f32")
        for i in range(4):
            A(f"    v_sub_f32 v{S+i}, v{S+i}, v{M}")
        for i in range(4):
            A(f"    v_mul_f32 v{S+i}, s62, v{S+i}")
        for i in range(4):
            A(f"    v_exp_f32 v{S+i}, v{S+i}")
        A("    s_nop 0")
        A(f"    v_add_f32 v{M}, v{S}, v{S+1}")
        A(f"    v_add_f32 v{M2}, v{S+2}, v{S+3}")
        A(f"    v_add_f32 v{M}, v{M}, v{M2}")
        xreduce("v_add_f32")
        A(f"    v_rcp_f32 v{M}, v{M}")
        A("    s_nop 0")
        for i in range(4):
            A(f"    v_mul_f32 v{S+i}, v{S+i}, v{M}")
        A(f"    v_cvt_pk_bf16_f32 v{PP}, v{S}, v{S+1}")
        A(f"    v_cvt_pk_bf16_f32 v{PP+1}, v{S+2}, v{S+3}")
    for i in range(32):
        A(f"    v_mov_b32 v{ACC+i}, 0")
    st = phase(False, st)
    A("    s_nop 7")
    for e in range(8):
        a = ACC + 4 * e
        A(f"    v_cvt_pk_bf16_f32 v{X+2*e}, v{a}, v{a+1}")
        A(f"    v_cvt_pk_bf16_f32 v{X+2*e+1}, v{a+2}, v{a+3}")
    A("    s_waitcnt vmcnt(0)")
    O0, O1 = ACC, BUF0
    for e in range(8):
        o = O0 + 4 * e
        A(f"    v_mfma_f32_16x16x16_bf16 v[{o}:{o+3}], v[{P}:{P+1}], v[{X+2*e}:{X+2*e+1}], 0")
    for e in range(8):
        o = O1 + 4 * e
        A(f"    v_mfma_f32_16x16x16_bf16 v[{o}:{o+3}], v[{P+2}:{P+3}], v[{X+2*e}:{X+2*e+1}], 0")
    R = BUF0 + 32
    for tl, O in ((0, O0), (1, O1)):
        if tl == 1:
            A("    s_nop 3")
        for i in range(4):
            r = R + 16 * tl + 4 * i
            for p in range(4):
                A(f"    v_cvt_pk_bf16_f32 v{r+p}, v{O+4*(2*p)+i}, v{O+4*(2*p+1)+i}")
            if tl == 0:
                A(f"    buffer_store_dwordx4 v[{r}:{r+3}], v{VOFF_O}, s[{SO}:{SO+3}], 0 offen offset:{256*i}{of}")
            else:
                A(f"    buffer_store_dwordx4 v[{r}:{r+3}], v{VOFF_O}, s[{SO}:{SO+3}], s49 offen offset:{256*i}{of}")
    if ts:
        stamp()
        A("    s_getreg_b32 s60, hwreg(HW_REG_XCC_ID)")
        A("    s_getreg_b32 s61, hwreg(HW_REG_HW_ID)")
        A(f"    v_writelane_b32 v{VTS}, s60, 62")
        A(f"    v_writelane_b32 v{VTS}, s61, 63")
        A(f"    s_lshl_b32 s62, s2, 8")
        A("    s_add_u32 s58, s58, s62")
        A("    s_addc_u32 s59, s59, 0")
        A("    v_lshlrev_b32 v16, 2, v0")
        A(f"    global_store_dword v16, v{VTS}, s[58:59]")
    if dbgts:
        A("    s_memrealtime s[68:69]")
        A("    s_getreg_b32 s60, hwreg(HW_REG_XCC_ID)")
        A("    s_and_b32 s60, s60, 7")
        A("    s_lshl_b32 s60, s60, 2")
        A("    s_add_u32 s60, s60, 8")
        A(f"    s_mov_b32 s{SG+2}, 256")
        A("    s_waitcnt lgkmcnt(0)")
        A("    s_not_b32 s66, s66")
        A("    v_mov_b32 v8, s66")
        A("    v_mov_b32 v9, s68")
        A("    s_mov_b64 exec, 1")
        A(f"    buffer_atomic_umax v8, off, s[{SG}:{SG+3}], 0 sc1")
        A(f"    buffer_atomic_umax v9, off, s[{SG}:{SG+3}], 0 offset:4 sc1")
        A(f"    buffer_atomic_umax v9, off, s[{SG}:{SG+3}], s60 sc1")
    A("L_end:")
    A("    s_endpgm")
    A('.section .rodata,"a"')
    A(".p2align 6")
    A(f".amdhsa_kernel {NAME}_kernel")
    nv = nvf if nvf else NV
    assert nv >= NV
    A(f"  .amdhsa_next_free_vgpr {nv}")
    A("  .amdhsa_next_free_sgpr 72")
    A(f"  .amdhsa_accum_offset {min(256,(nv+3)//4*4)}")
    A("  .amdhsa_group_segment_fixed_size 0")
    A("  .amdhsa_kernarg_size 64")
    A("  .amdhsa_user_sgpr_count 2")
    A("  .amdhsa_user_sgpr_kernarg_segment_ptr 1")
    A("  .amdhsa_system_sgpr_workgroup_id_x 1")
    A(".end_amdhsa_kernel")
    return "\n".join(L) + "\n"


if __name__ == "__main__":
    ap = argparse.ArgumentParser()
    ap.add_argument("--lo", type=int, default=3)
    ap.add_argument("--hi", type=int, default=3)
    ap.add_argument("--flags", default="nt")
    ap.add_argument("--eflags", default="")
    ap.add_argument("--qflags", default="nt")
    ap.add_argument("--oflags", default="nt")
    ap.add_argument("--pflags", default="sc0 sc1")
    ap.add_argument("--vflags", default=None)
    ap.add_argument("--sflags", default="sc0 sc1")
    ap.add_argument("--rdiv", type=int, default=2)
    ap.add_argument("--tpb", type=int, default=5625)
    for k in ["ts", "rot", "noe", "nvf", "ctl", "thr", "ctlk", "thr2", "nopoll", "norep", "noclk", "swapkv", "dbgts"]:
        ap.add_argument("--" + k, type=int, default=0)
    ap.add_argument("--ldsx", type=int, default=65536)
    ap.add_argument("--tsdiv", type=int, default=2)
    ap.add_argument("--cdiv", type=int, default=2)
    ap.add_argument("--nrep", type=int, default=16)
    ap.add_argument("-o", default="-")
    a = vars(ap.parse_args())
    o = a.pop("o")
    s = gen(**a)
    if o == "-":
        sys.stdout.write(s)
    else:
        open(o, "w").write(s)
```

```python
import sys, argparse

NAME = "standalone__low_rank_proj_linformer__sampling"
HEADER = open('cdna_kernels/' + NAME + '.s.ref').read().split('; @launch')[0]


def gen(win=12, ntail=0, dtail=2, wtail=0, flags='nt', eflags='', qflags='nt', oflags='nt', ts=0, tsdiv=4, rot=0,
        ldsx=65536, qpos=0, efirst=0, nhead=0, dhead=2, whead=0, tsfine=0):
    L = []
    A = L.append
    N = max(2, dtail if ntail else 2, dhead if nhead else 2)
    BPM = 128
    lds = max(8192, ldsx)
    A(HEADER + f"; @launch grid=(512,1,1) block=(64,1,1) lds={lds}")
    A('.amdgcn_target "amdgcn-amd-amdhsa--gfx950"')
    A(".text")
    A(f".globl {NAME}_kernel")
    A(".p2align 8")
    A(f".type {NAME}_kernel,@function")
    A(f"{NAME}_kernel:")
    VOFF_D, VOFF_E, VLDS_Q, VOFF_O, VTS = 1, 2, 3, 4, 5
    ACC = 8
    T = [40, 44]
    P = 48
    X = 52
    Q = 68
    BUF0 = 84
    def bufd(b, i): return BUF0 + 36 * b + 4 * i
    def bufe(b): return BUF0 + 36 * b + 32
    NV = max(BUF0 + 36 * N, BUF0 + 64)
    assert NV <= 256, NV
    SD, SP, SQ, SO = 16, 20, 24, 28
    SVB, SFB = 36, 38
    SSEL0, SSEL1, SIT, SDOFF, SEOFF, SCNT, STS = 40, 41, 42, 43, 44, 47, 63
    ntf = (" " + flags) if flags else ""
    entf = (" " + eflags) if eflags else ""
    qf = (" " + qflags) if qflags else ""
    of = (" " + oflags) if oflags else ""
    uid = [0]
    def lab(p):
        uid[0] += 1
        return f"L_{p}{uid[0]}"

    def stamp(inloop=False):
        if not ts:
            return
        lbl = lab("ts")
        if inloop and tsdiv > 1:
            A(f"    s_and_b32 s52, s{SIT}, {tsdiv-1}")
            A(f"    s_cmp_lg_u32 s52, {tsdiv-1}")
            A(f"    s_cbranch_scc1 {lbl}")
        A("    s_memrealtime s[50:51]")
        A(f"    s_mov_b32 m0, s{STS}")
        A("    s_waitcnt lgkmcnt(0)")
        A(f"    v_writelane_b32 v{VTS}, s50, m0")
        A(f"    s_add_u32 s{STS}, s{STS}, 1")
        A(f"{lbl}:")

    A("    s_cmp_ge_u32 s2, 512")
    A("    s_cbranch_scc1 L_end")
    if ts:
        A(f"    s_mov_b32 s{STS}, 0")
        A(f"    v_mov_b32 v{VTS}, 0")
        stamp()
    A("    s_load_dwordx8 s[4:11], s[0:1], 0")
    A("    s_load_dwordx4 s[12:15], s[0:1], 32")
    if ts:
        A("    s_load_dwordx2 s[58:59], s[0:1], 56")
    A("    v_and_b32 v9, 15, v0")
    A("    v_lshrrev_b32 v10, 4, v0")
    A(f"    v_lshlrev_b32 v{VOFF_D}, 11, v10")
    A(f"    v_lshl_add_u32 v{VOFF_D}, v9, 4, v{VOFF_D}")
    A(f"    v_lshlrev_b32 v{VOFF_E}, 13, v9")
    A(f"    v_lshl_add_u32 v{VOFF_E}, v10, 4, v{VOFF_E}")
    A("    s_lshl_b32 s3, s2, 20")
    A("    s_lshl_b32 s48, s2, 13")
    A(f"    s_mov_b32 s{SD+2}, 0x100000")
    A(f"    s_mov_b32 s{SD+3}, 0x20000")
    A(f"    s_mov_b32 s{SP+2}, 0x20000")
    A(f"    s_mov_b32 s{SP+3}, 0x20000")
    if rot:
        A("    s_lshr_b32 s49, s2, 3")
        A(f"    s_mul_i32 s49, s49, {rot}")
        A(f"    s_and_b32 s49, s49, {BPM-1}")
        A(f"    s_lshl_b32 s{SDOFF}, s49, 13")
        A(f"    s_lshl_b32 s{SEOFF}, s49, 6")
    else:
        A(f"    s_mov_b32 s{SDOFF}, 0")
        A(f"    s_mov_b32 s{SEOFF}, 0")
    A(f"    s_mov_b32 s{SCNT}, 0")
    A("    s_waitcnt lgkmcnt(0)")
    if tsfine: stamp()
    A(f"    s_add_u32 s{SD}, s6, s3")
    A(f"    s_addc_u32 s{SD+1}, s7, 0")
    A(f"    s_mov_b32 s{SP}, s10")
    A(f"    s_mov_b32 s{SP+1}, s11")

    PER = 9
    def loads(b, check, older=0, w=0):
        n = older
        def eload():
            A(f"    buffer_load_dwordx4 v[{bufe(b)}:{bufe(b)+3}], v{VOFF_E}, s[{SP}:{SP+3}], s{SEOFF} offen{entf}")
        if efirst:
            eload(); n += 1
        for i in range(8):
            r = bufd(b, i)
            off = f" offset:{i*256}" if i else ""
            if w and n >= w:
                A(f"    s_waitcnt vmcnt({w-1})")
            A(f"    buffer_load_dwordx4 v[{r}:{r+3}], v{VOFF_D}, s[{SD}:{SD+3}], s{SDOFF} offen{off}{ntf}")
            n += 1
        if not efirst:
            eload()
        A(f"    s_add_u32 s{SDOFF}, s{SDOFF}, 0x2000")
        A(f"    s_add_u32 s{SEOFF}, s{SEOFF}, 64")
        A(f"    s_and_b32 s{SDOFF}, s{SDOFF}, 0xfffff")
        A(f"    s_and_b32 s{SEOFF}, s{SEOFF}, 0x1fff")
        A(f"    s_add_u32 s{SCNT}, s{SCNT}, 1")
        if check == 'K':
            A(f"    s_cmp_eq_u32 s{SCNT}, 128")
            A(f"    s_cselect_b64 s[{SD}:{SD+1}], s[{SVB}:{SVB+1}], s[{SD}:{SD+1}]")
            A(f"    s_cselect_b64 s[{SP}:{SP+1}], s[{SFB}:{SFB+1}], s[{SP}:{SP+1}]")
        elif check == 'V':
            A(f"    s_cmp_eq_u32 s{SCNT}, 256")
            A(f"    s_cselect_b32 s{SD+2}, 0, s{SD+2}")
            A(f"    s_cselect_b32 s{SP+2}, 0, s{SP+2}")

    def perms(b, e):
        w, h = e >> 1, e & 1
        t = T[e & 1]
        sel = SSEL1 if h else SSEL0
        for q in range(4):
            lo_ = bufd(b, 2 * q) + w
            hi_ = bufd(b, 2 * q + 1) + w
            A(f"    v_perm_b32 v{t+q}, v{hi_}, v{lo_}, s{sel}")

    def mfma(b, e, isK):
        t = T[e & 1]
        a = ACC + 4 * e
        eb = bufe(b)
        if isK:
            A(f"    v_mfma_f32_16x16x32_bf16 v[{a}:{a+3}], v[{t}:{t+3}], v[{eb}:{eb+3}], v[{a}:{a+3}]")
        else:
            A(f"    v_mfma_f32_16x16x32_bf16 v[{a}:{a+3}], v[{eb}:{eb+3}], v[{t}:{t+3}], v[{a}:{a+3}]")

    def compute(b, isK):
        perms(b, 0)
        for e in range(8):
            if e < 7:
                perms(b, e + 1)
            else:
                A("    s_nop 1")
            mfma(b, e, isK)

    def qdma():
        A(f"    s_add_u32 s{SQ}, s4, s48")
        A(f"    s_addc_u32 s{SQ+1}, s5, 0")
        A(f"    s_mov_b32 s{SQ+2}, 0x2000")
        A(f"    s_mov_b32 s{SQ+3}, 0x20000")
        A("    s_mov_b32 m0, 0")
        A(f"    v_lshlrev_b32 v6, 4, v0")
        for j in range(4):
            off = f" offset:{j*1024}" if j else ""
            A(f"    buffer_load_dwordx4 v6, s[{SQ}:{SQ+3}], 0 offen{off}{qf} lds")
        A("    s_mov_b32 m0, s49")
        A("    s_nop 0")
        for j in range(4):
            off = f" offset:{j*1024}" if j else ""
            A(f"    buffer_load_dwordx4 v6, s[{SQ}:{SQ+3}], s49 offen{off}{qf} lds")

    d0 = dhead if nhead else 2
    for b in range(d0):
        loads(b, None)
    A("    s_movk_i32 s49, 0x1000")
    if qpos == 0:
        qdma()
    A(f"    s_add_u32 s{SVB}, s8, s3")
    A(f"    s_addc_u32 s{SVB+1}, s9, 0")
    A(f"    s_mov_b32 s{SFB}, s12")
    A(f"    s_mov_b32 s{SFB+1}, s13")
    A(f"    s_add_u32 s{SO}, s14, s48")
    A(f"    s_addc_u32 s{SO+1}, s15, 0")
    A(f"    s_mov_b32 s{SO+2}, 0x2000")
    A(f"    s_mov_b32 s{SO+3}, 0x20000")
    A(f"    s_mov_b32 s{SSEL0}, 0x05040100")
    A(f"    s_mov_b32 s{SSEL1}, 0x07060302")
    A(f"    v_lshlrev_b32 v{VLDS_Q}, 8, v9")
    A(f"    v_lshl_add_u32 v{VLDS_Q}, v10, 6, v{VLDS_Q}")
    A(f"    v_lshlrev_b32 v{VOFF_O}, 10, v10")
    A(f"    v_lshl_add_u32 v{VOFF_O}, v9, 4, v{VOFF_O}")
    for i in range(32):
        A(f"    v_mov_b32 v{ACC+i}, 0")

    def loop(nm, isK, ring, nblocks, w):
        D = len(ring)
        assert nblocks % D == 0, (nm, nblocks, D)
        if nblocks == 0:
            return
        chk = 'K' if isK else 'V'
        A(f"    s_mov_b32 s{SIT}, 0")
        A(f"L_{nm}:")
        for b in ring:
            A(f"    s_waitcnt vmcnt({PER*(D-1)})")
            compute(b, isK)
            loads(b, chk, PER * (D - 1), w)
        stamp(True)
        A(f"    s_add_u32 s{SIT}, s{SIT}, 1")
        A(f"    s_cmp_lt_u32 s{SIT}, {nblocks // D}")
        A(f"    s_cbranch_scc1 L_{nm}")

    done = 0
    ring2 = [0, 1]
    if tsfine:
        stamp()
        nq = 8 if qpos == 0 else 0
        A(f"    s_waitcnt vmcnt({17+nq})")
        stamp()
        A(f"    s_waitcnt vmcnt({10+nq})")
        stamp()
        A(f"    s_waitcnt vmcnt({9+nq})")
        stamp()
        A(f"    s_waitcnt vmcnt({nq})")
        stamp()
        A(f"    s_waitcnt vmcnt(0)")
        stamp()
        for k in range(8):
            for b in ring2:
                A(f"    s_waitcnt vmcnt({PER})")
                compute(b, True)
                loads(b, 'K', PER, win)
            stamp()
        done = 16
    if nhead:
        ringh = list(range(dhead))
        loop("khead", True, ringh, nhead, whead)
        done += nhead
        for k in range(dhead - 2):
            A(f"    s_waitcnt vmcnt({PER*(dhead-1-k)})")
            compute(ringh[k], True)
            done += 1
        ring2 = ringh[dhead - 2:]
    if qpos:
        nq = qpos
        loop("kpre", True, ring2, nq, win)
        done += nq
        qdma()
    loop("kloop", True, ring2, BPM - done, win)
    A("    s_nop 7")
    for i in range(4):
        for p in range(4):
            A(f"    v_cvt_pk_bf16_f32 v{X+4*i+p}, v{ACC+4*(2*p)+i}, v{ACC+4*(2*p+1)+i}")
    A("    s_mov_b32 s60, 0x3db504f3")
    A("    s_mov_b32 s61, 0xffff0000")
    A("    s_mov_b32 s62, 0x3fb8aa3b")
    for i in range(4):
        A(f"    ds_read_b128 v[{Q+4*i}:{Q+4*i+3}], v{VLDS_Q} offset:{16*i}")
    for i in range(4):
        A(f"    ds_read_b128 v[{ACC+4*i}:{ACC+4*i+3}], v{VLDS_Q} offset:{4096+16*i}")
    S0, S1 = ACC + 16, ACC + 20
    U0, U1 = ACC + 24, ACC + 28
    A(f"    s_waitcnt lgkmcnt(4)")
    for i in range(4):
        c = "0" if i == 0 else f"v[{S0}:{S0+3}]"
        A(f"    v_mfma_f32_16x16x32_bf16 v[{S0}:{S0+3}], v[{X+4*i}:{X+4*i+3}], v[{Q+4*i}:{Q+4*i+3}], {c}")
    A(f"    s_waitcnt lgkmcnt(0)")
    for i in range(4):
        c = "0" if i == 0 else f"v[{S1}:{S1+3}]"
        A(f"    v_mfma_f32_16x16x32_bf16 v[{S1}:{S1+3}], v[{X+4*i}:{X+4*i+3}], v[{ACC+4*i}:{ACC+4*i+3}], {c}")
    A("    s_nop 7")
    for S, U, PP in ((S0, U0, P), (S1, U1, P + 2)):
        A(f"    v_cvt_pk_bf16_f32 v{U}, v{S}, v{S+1}")
        A(f"    v_cvt_pk_bf16_f32 v{U+1}, v{S+2}, v{S+3}")
        A(f"    v_lshlrev_b32 v{S}, 16, v{U}")
        A(f"    v_and_b32 v{S+1}, s61, v{U}")
        A(f"    v_lshlrev_b32 v{S+2}, 16, v{U+1}")
        A(f"    v_and_b32 v{S+3}, s61, v{U+1}")
        for i in range(4):
            A(f"    v_mul_f32 v{S+i}, s60, v{S+i}")
        A(f"    v_cvt_pk_bf16_f32 v{U}, v{S}, v{S+1}")
        A(f"    v_cvt_pk_bf16_f32 v{U+1}, v{S+2}, v{S+3}")
        A(f"    v_lshlrev_b32 v{S}, 16, v{U}")
        A(f"    v_and_b32 v{S+1}, s61, v{U}")
        A(f"    v_lshlrev_b32 v{S+2}, 16, v{U+1}")
        A(f"    v_and_b32 v{S+3}, s61, v{U+1}")
        M, M2 = U, U + 1
        A(f"    v_max_f32 v{M}, v{S}, v{S+1}")
        A(f"    v_max3_f32 v{M}, v{M}, v{S+2}, v{S+3}")
        def xreduce(op):
            A(f"    v_mov_b32 v{M2}, v{M}")
            A("    s_nop 1")
            A(f"    v_permlane16_swap_b32 v{M}, v{M2}")
            A(f"    {op} v{M}, v{M}, v{M2}")
            A(f"    v_mov_b32 v{M2}, v{M}")
            A("    s_nop 1")
            A(f"    v_permlane32_swap_b32 v{M}, v{M2}")
            A(f"    {op} v{M}, v{M}, v{M2}")
        xreduce("v_max_f32")
        for i in range(4):
            A(f"    v_sub_f32 v{S+i}, v{S+i}, v{M}")
        for i in range(4):
            A(f"    v_mul_f32 v{S+i}, s62, v{S+i}")
        for i in range(4):
            A(f"    v_exp_f32 v{S+i}, v{S+i}")
        A("    s_nop 0")
        A(f"    v_add_f32 v{M}, v{S}, v{S+1}")
        A(f"    v_add_f32 v{M2}, v{S+2}, v{S+3}")
        A(f"    v_add_f32 v{M}, v{M}, v{M2}")
        xreduce("v_add_f32")
        A(f"    v_rcp_f32 v{M}, v{M}")
        A("    s_nop 0")
        for i in range(4):
            A(f"    v_mul_f32 v{S+i}, v{S+i}, v{M}")
        A(f"    v_cvt_pk_bf16_f32 v{PP}, v{S}, v{S+1}")
        A(f"    v_cvt_pk_bf16_f32 v{PP+1}, v{S+2}, v{S+3}")
    for i in range(32):
        A(f"    v_mov_b32 v{ACC+i}, 0")
    loop("vloop", False, ring2, BPM - ntail, win)
    if ntail:
        extra = [b for b in range(N) if b not in ring2][:dtail - 2]
        n = 2 * PER
        for b in extra:
            loads(b, 'V', n, wtail)
            n += PER
        loop("vtail", False, ring2 + extra, ntail, wtail)
    stamp()
    A("    s_nop 7")
    for e in range(8):
        a = ACC + 4 * e
        A(f"    v_cvt_pk_bf16_f32 v{X+2*e}, v{a}, v{a+1}")
        A(f"    v_cvt_pk_bf16_f32 v{X+2*e+1}, v{a+2}, v{a+3}")
    O0 = ACC
    for e in range(8):
        o = O0 + 4 * e
        A(f"    v_mfma_f32_16x16x16_bf16 v[{o}:{o+3}], v[{P}:{P+1}], v[{X+2*e}:{X+2*e+1}], 0")
    A("    s_waitcnt vmcnt(0)")
    O1 = BUF0
    for e in range(8):
        o = O1 + 4 * e
        A(f"    v_mfma_f32_16x16x16_bf16 v[{o}:{o+3}], v[{P+2}:{P+3}], v[{X+2*e}:{X+2*e+1}], 0")
    R = BUF0 + 32
    for tl, O in ((0, O0), (1, O1)):
        if tl == 1:
            A("    s_nop 3")
        for i in range(4):
            r = R + 16 * tl + 4 * i
            for p in range(4):
                A(f"    v_cvt_pk_bf16_f32 v{r+p}, v{O+4*(2*p)+i}, v{O+4*(2*p+1)+i}")
            so = "0" if tl == 0 else "s49"
            A(f"    buffer_store_dwordx4 v[{r}:{r+3}], v{VOFF_O}, s[{SO}:{SO+3}], {so} offen offset:{256*i}{of}")
    if ts:
        stamp()
        A("    s_getreg_b32 s60, hwreg(HW_REG_XCC_ID)")
        A("    s_getreg_b32 s61, hwreg(HW_REG_HW_ID)")
        A(f"    v_writelane_b32 v{VTS}, s60, 62")
        A(f"    v_writelane_b32 v{VTS}, s61, 63")
        A(f"    s_lshl_b32 s62, s2, 8")
        A("    s_add_u32 s58, s58, s62")
        A("    s_addc_u32 s59, s59, 0")
        A("    v_lshlrev_b32 v16, 2, v0")
        A(f"    global_store_dword v16, v{VTS}, s[58:59]")
    A("L_end:")
    A("    s_endpgm")
    A('.section .rodata,"a"')
    A(".p2align 6")
    A(f".amdhsa_kernel {NAME}_kernel")
    A(f"  .amdhsa_next_free_vgpr {NV}")
    A("  .amdhsa_next_free_sgpr 64")
    A(f"  .amdhsa_accum_offset {min(256,(NV+3)//4*4)}")
    A("  .amdhsa_group_segment_fixed_size 0")
    A("  .amdhsa_kernarg_size 64")
    A("  .amdhsa_user_sgpr_count 2")
    A("  .amdhsa_user_sgpr_kernarg_segment_ptr 1")
    A("  .amdhsa_system_sgpr_workgroup_id_x 1")
    A(".end_amdhsa_kernel")
    return "\n".join(L) + "\n"


if __name__ == "__main__":
    ap = argparse.ArgumentParser()
    for k, d in dict(win=12, ntail=0, dtail=2, wtail=0, ts=0, tsdiv=4, rot=0, ldsx=65536, qpos=0, efirst=0, nhead=0, dhead=2, whead=0, tsfine=0).items():
        ap.add_argument("--" + k, type=int, default=d)
    for k, d in dict(flags='nt', eflags='', qflags='nt', oflags='nt').items():
        ap.add_argument("--" + k, default=d)
    ap.add_argument("-o", default="-")
    a = vars(ap.parse_args())
    o = a.pop("o")
    s = gen(**a)
    if o == "-":
        sys.stdout.write(s)
    else:
        open(o, "w").write(s)
```

```python
import sys, argparse

NAME = "standalone__low_rank_proj_linformer__sampling"
HEADER = open('cdna_kernels/' + NAME + '.s.ref').read().split('; @launch')[0]


def gen(win=12, ntail=0, dtail=2, wtail=0, flags='nt', eflags='', qflags='nt', oflags='nt', ts=0, tsdiv=4, rot=0,
        ldsx=65536, qpos=0, efirst=0, nhead=0, dhead=2, whead=0, tsfine=0, warm=0, delay=0):
    L = []
    A = L.append
    N = max(2, dtail if ntail else 2, dhead if nhead else 2)
    BPM = 128
    lds = max(8192, ldsx)
    A(HEADER + f"; @launch grid=(512,1,1) block=(64,1,1) lds={lds}")
    A('.amdgcn_target "amdgcn-amd-amdhsa--gfx950"')
    A(".text")
    A(f".globl {NAME}_kernel")
    A(".p2align 8")
    A(f".type {NAME}_kernel,@function")
    A(f"{NAME}_kernel:")
    VOFF_D, VOFF_E, VLDS_Q, VOFF_O, VTS = 1, 2, 3, 4, 5
    ACC = 8
    T = [40, 44]
    P = 48
    X = 52
    Q = 68
    BUF0 = 84
    def bufd(b, i): return BUF0 + 36 * b + 4 * i
    def bufe(b): return BUF0 + 36 * b + 32
    NV = max(BUF0 + 36 * N, BUF0 + 64)
    assert NV <= 256, NV
    SD, SP, SQ, SO = 16, 20, 24, 28
    SVB, SFB = 36, 38
    SSEL0, SSEL1, SIT, SDOFF, SEOFF, SCNT, STS = 40, 41, 42, 43, 44, 47, 63
    ntf = (" " + flags) if flags else ""
    entf = (" " + eflags) if eflags else ""
    qf = (" " + qflags) if qflags else ""
    of = (" " + oflags) if oflags else ""
    uid = [0]
    def lab(p):
        uid[0] += 1
        return f"L_{p}{uid[0]}"

    def stamp(inloop=False):
        if not ts:
            return
        lbl = lab("ts")
        if inloop and tsdiv > 1:
            A(f"    s_and_b32 s52, s{SIT}, {tsdiv-1}")
            A(f"    s_cmp_lg_u32 s52, {tsdiv-1}")
            A(f"    s_cbranch_scc1 {lbl}")
        A("    s_memrealtime s[50:51]")
        A(f"    s_mov_b32 m0, s{STS}")
        A("    s_waitcnt lgkmcnt(0)")
        A(f"    v_writelane_b32 v{VTS}, s50, m0")
        A(f"    s_add_u32 s{STS}, s{STS}, 1")
        A(f"{lbl}:")

    A("    s_cmp_ge_u32 s2, 512")
    A("    s_cbranch_scc1 L_end")
    if ts:
        A(f"    s_mov_b32 s{STS}, 0")
        A(f"    v_mov_b32 v{VTS}, 0")
        stamp()
    if delay:
        A("    s_memrealtime s[50:51]")
        A("    s_waitcnt lgkmcnt(0)")
        A(f"    s_add_u32 s52, s50, {delay*100}")
        A("L_delay:")
        A("    s_sleep 8")
        A("    s_memrealtime s[50:51]")
        A("    s_waitcnt lgkmcnt(0)")
        A("    s_sub_u32 s53, s50, s52")
        A("    s_cmp_lt_i32 s53, 0")
        A("    s_cbranch_scc1 L_delay")
    A("    s_load_dwordx8 s[4:11], s[0:1], 0")
    A("    s_load_dwordx4 s[12:15], s[0:1], 32")
    if ts:
        A("    s_load_dwordx2 s[58:59], s[0:1], 56")
    A("    v_and_b32 v9, 15, v0")
    A("    v_lshrrev_b32 v10, 4, v0")
    A(f"    v_lshlrev_b32 v{VOFF_D}, 11, v10")
    A(f"    v_lshl_add_u32 v{VOFF_D}, v9, 4, v{VOFF_D}")
    A(f"    v_lshlrev_b32 v{VOFF_E}, 13, v9")
    A(f"    v_lshl_add_u32 v{VOFF_E}, v10, 4, v{VOFF_E}")
    A("    s_lshl_b32 s3, s2, 20")
    A("    s_lshl_b32 s48, s2, 13")
    A(f"    s_mov_b32 s{SD+2}, 0x100000")
    A(f"    s_mov_b32 s{SD+3}, 0x20000")
    A(f"    s_mov_b32 s{SP+2}, 0x20000")
    A(f"    s_mov_b32 s{SP+3}, 0x20000")
    if rot:
        A("    s_lshr_b32 s49, s2, 3")
        A(f"    s_mul_i32 s49, s49, {rot}")
        A(f"    s_and_b32 s49, s49, {BPM-1}")
        A(f"    s_lshl_b32 s{SDOFF}, s49, 13")
        A(f"    s_lshl_b32 s{SEOFF}, s49, 6")
    else:
        A(f"    s_mov_b32 s{SDOFF}, 0")
        A(f"    s_mov_b32 s{SEOFF}, 0")
    A(f"    s_mov_b32 s{SCNT}, 0")
    A("    s_waitcnt lgkmcnt(0)")
    if tsfine: stamp()
    A(f"    s_add_u32 s{SD}, s6, s3")
    A(f"    s_addc_u32 s{SD+1}, s7, 0")
    A(f"    s_mov_b32 s{SP}, s10")
    A(f"    s_mov_b32 s{SP+1}, s11")

    PER = 9
    def loads(b, check, older=0, w=0):
        n = older
        def eload():
            A(f"    buffer_load_dwordx4 v[{bufe(b)}:{bufe(b)+3}], v{VOFF_E}, s[{SP}:{SP+3}], s{SEOFF} offen{entf}")
        if efirst:
            eload(); n += 1
        for i in range(8):
            r = bufd(b, i)
            off = f" offset:{i*256}" if i else ""
            if w and n >= w:
                A(f"    s_waitcnt vmcnt({w-1})")
            A(f"    buffer_load_dwordx4 v[{r}:{r+3}], v{VOFF_D}, s[{SD}:{SD+3}], s{SDOFF} offen{off}{ntf}")
            n += 1
        if not efirst:
            eload()
        A(f"    s_add_u32 s{SDOFF}, s{SDOFF}, 0x2000")
        A(f"    s_add_u32 s{SEOFF}, s{SEOFF}, 64")
        A(f"    s_and_b32 s{SDOFF}, s{SDOFF}, 0xfffff")
        A(f"    s_and_b32 s{SEOFF}, s{SEOFF}, 0x1fff")
        A(f"    s_add_u32 s{SCNT}, s{SCNT}, 1")
        if check == 'K':
            A(f"    s_cmp_eq_u32 s{SCNT}, 128")
            A(f"    s_cselect_b64 s[{SD}:{SD+1}], s[{SVB}:{SVB+1}], s[{SD}:{SD+1}]")
            A(f"    s_cselect_b64 s[{SP}:{SP+1}], s[{SFB}:{SFB+1}], s[{SP}:{SP+1}]")
        elif check == 'V':
            A(f"    s_cmp_eq_u32 s{SCNT}, 256")
            A(f"    s_cselect_b32 s{SD+2}, 0, s{SD+2}")
            A(f"    s_cselect_b32 s{SP+2}, 0, s{SP+2}")

    def perms(b, e):
        w, h = e >> 1, e & 1
        t = T[e & 1]
        sel = SSEL1 if h else SSEL0
        for q in range(4):
            lo_ = bufd(b, 2 * q) + w
            hi_ = bufd(b, 2 * q + 1) + w
            A(f"    v_perm_b32 v{t+q}, v{hi_}, v{lo_}, s{sel}")

    def mfma(b, e, isK):
        t = T[e & 1]
        a = ACC + 4 * e
        eb = bufe(b)
        if isK:
            A(f"    v_mfma_f32_16x16x32_bf16 v[{a}:{a+3}], v[{t}:{t+3}], v[{eb}:{eb+3}], v[{a}:{a+3}]")
        else:
            A(f"    v_mfma_f32_16x16x32_bf16 v[{a}:{a+3}], v[{eb}:{eb+3}], v[{t}:{t+3}], v[{a}:{a+3}]")

    def compute(b, isK):
        perms(b, 0)
        for e in range(8):
            if e < 7:
                perms(b, e + 1)
            else:
                A("    s_nop 1")
            mfma(b, e, isK)

    def qdma():
        A(f"    s_add_u32 s{SQ}, s4, s48")
        A(f"    s_addc_u32 s{SQ+1}, s5, 0")
        A(f"    s_mov_b32 s{SQ+2}, 0x2000")
        A(f"    s_mov_b32 s{SQ+3}, 0x20000")
        A("    s_mov_b32 m0, 0")
        A(f"    v_lshlrev_b32 v6, 4, v0")
        for j in range(4):
            off = f" offset:{j*1024}" if j else ""
            A(f"    buffer_load_dwordx4 v6, s[{SQ}:{SQ+3}], 0 offen{off}{qf} lds")
        A("    s_mov_b32 m0, s49")
        A("    s_nop 0")
        for j in range(4):
            off = f" offset:{j*1024}" if j else ""
            A(f"    buffer_load_dwordx4 v6, s[{SQ}:{SQ+3}], s49 offen{off}{qf} lds")

    d0 = dhead if nhead else 2
    for b in range(d0):
        loads(b, None)
    A("    s_movk_i32 s49, 0x1000")
    if qpos == 0:
        qdma()
    A(f"    s_add_u32 s{SVB}, s8, s3")
    A(f"    s_addc_u32 s{SVB+1}, s9, 0")
    A(f"    s_mov_b32 s{SFB}, s12")
    A(f"    s_mov_b32 s{SFB+1}, s13")
    A(f"    s_add_u32 s{SO}, s14, s48")
    A(f"    s_addc_u32 s{SO+1}, s15, 0")
    A(f"    s_mov_b32 s{SO+2}, 0x2000")
    A(f"    s_mov_b32 s{SO+3}, 0x20000")
    if warm:
        A(f"    s_load_dword s53, s[{SVB}:{SVB+1}], 0")
        A(f"    s_load_dword s54, s[{SFB}:{SFB+1}], 0")
        A(f"    s_load_dword s55, s[{SO}:{SO+1}], 0")
    A(f"    s_mov_b32 s{SSEL0}, 0x05040100")
    A(f"    s_mov_b32 s{SSEL1}, 0x07060302")
    A(f"    v_lshlrev_b32 v{VLDS_Q}, 8, v9")
    A(f"    v_lshl_add_u32 v{VLDS_Q}, v10, 6, v{VLDS_Q}")
    A(f"    v_lshlrev_b32 v{VOFF_O}, 10, v10")
    A(f"    v_lshl_add_u32 v{VOFF_O}, v9, 4, v{VOFF_O}")
    for i in range(32):
        A(f"    v_mov_b32 v{ACC+i}, 0")

    def loop(nm, isK, ring, nblocks, w):
        D = len(ring)
        assert nblocks % D == 0, (nm, nblocks, D)
        if nblocks == 0:
            return
        chk = 'K' if isK else 'V'
        A(f"    s_mov_b32 s{SIT}, 0")
        A(f"L_{nm}:")
        for b in ring:
            A(f"    s_waitcnt vmcnt({PER*(D-1)})")
            compute(b, isK)
            loads(b, chk, PER * (D - 1), w)
        stamp(True)
        A(f"    s_add_u32 s{SIT}, s{SIT}, 1")
        A(f"    s_cmp_lt_u32 s{SIT}, {nblocks // D}")
        A(f"    s_cbranch_scc1 L_{nm}")

    done = 0
    ring2 = [0, 1]
    if tsfine:
        stamp()
        nq = 8 if qpos == 0 else 0
        A(f"    s_waitcnt vmcnt({17+nq})")
        stamp()
        A(f"    s_waitcnt vmcnt({10+nq})")
        stamp()
        A(f"    s_waitcnt vmcnt({9+nq})")
        stamp()
        A(f"    s_waitcnt vmcnt({nq})")
        stamp()
        A(f"    s_waitcnt vmcnt(0)")
        stamp()
        for k in range(8):
            for b in ring2:
                A(f"    s_waitcnt vmcnt({PER})")
                compute(b, True)
                loads(b, 'K', PER, win)
            stamp()
        done = 16
    if nhead:
        ringh = list(range(dhead))
        loop("khead", True, ringh, nhead, whead)
        done += nhead
        for k in range(dhead - 2):
            A(f"    s_waitcnt vmcnt({PER*(dhead-1-k)})")
            compute(ringh[k], True)
            done += 1
        ring2 = ringh[dhead - 2:]
    if qpos:
        nq = qpos
        loop("kpre", True, ring2, nq, win)
        done += nq
        qdma()
    loop("kloop", True, ring2, BPM - done, win)
    if warm:
        A("    s_waitcnt lgkmcnt(0)")
    A("    s_nop 7")
    for i in range(4):
        for p in range(4):
            A(f"    v_cvt_pk_bf16_f32 v{X+4*i+p}, v{ACC+4*(2*p)+i}, v{ACC+4*(2*p+1)+i}")
    A("    s_mov_b32 s60, 0x3db504f3")
    A("    s_mov_b32 s61, 0xffff0000")
    A("    s_mov_b32 s62, 0x3fb8aa3b")
    for i in range(4):
        A(f"    ds_read_b128 v[{Q+4*i}:{Q+4*i+3}], v{VLDS_Q} offset:{16*i}")
    for i in range(4):
        A(f"    ds_read_b128 v[{ACC+4*i}:{ACC+4*i+3}], v{VLDS_Q} offset:{4096+16*i}")
    S0, S1 = ACC + 16, ACC + 20
    U0, U1 = ACC + 24, ACC + 28
    A(f"    s_waitcnt lgkmcnt(4)")
    for i in range(4):
        c = "0" if i == 0 else f"v[{S0}:{S0+3}]"
        A(f"    v_mfma_f32_16x16x32_bf16 v[{S0}:{S0+3}], v[{X+4*i}:{X+4*i+3}], v[{Q+4*i}:{Q+4*i+3}], {c}")
    A(f"    s_waitcnt lgkmcnt(0)")
    for i in range(4):
        c = "0" if i == 0 else f"v[{S1}:{S1+3}]"
        A(f"    v_mfma_f32_16x16x32_bf16 v[{S1}:{S1+3}], v[{X+4*i}:{X+4*i+3}], v[{ACC+4*i}:{ACC+4*i+3}], {c}")
    A("    s_nop 7")
    for S, U, PP in ((S0, U0, P), (S1, U1, P + 2)):
        A(f"    v_cvt_pk_bf16_f32 v{U}, v{S}, v{S+1}")
        A(f"    v_cvt_pk_bf16_f32 v{U+1}, v{S+2}, v{S+3}")
        A(f"    v_lshlrev_b32 v{S}, 16, v{U}")
        A(f"    v_and_b32 v{S+1}, s61, v{U}")
        A(f"    v_lshlrev_b32 v{S+2}, 16, v{U+1}")
        A(f"    v_and_b32 v{S+3}, s61, v{U+1}")
        for i in range(4):
            A(f"    v_mul_f32 v{S+i}, s60, v{S+i}")
        A(f"    v_cvt_pk_bf16_f32 v{U}, v{S}, v{S+1}")
        A(f"    v_cvt_pk_bf16_f32 v{U+1}, v{S+2}, v{S+3}")
        A(f"    v_lshlrev_b32 v{S}, 16, v{U}")
        A(f"    v_and_b32 v{S+1}, s61, v{U}")
        A(f"    v_lshlrev_b32 v{S+2}, 16, v{U+1}")
        A(f"    v_and_b32 v{S+3}, s61, v{U+1}")
        M, M2 = U, U + 1
        A(f"    v_max_f32 v{M}, v{S}, v{S+1}")
        A(f"    v_max3_f32 v{M}, v{M}, v{S+2}, v{S+3}")
        def xreduce(op):
            A(f"    v_mov_b32 v{M2}, v{M}")
            A("    s_nop 1")
            A(f"    v_permlane16_swap_b32 v{M}, v{M2}")
            A(f"    {op} v{M}, v{M}, v{M2}")
            A(f"    v_mov_b32 v{M2}, v{M}")
            A("    s_nop 1")
            A(f"    v_permlane32_swap_b32 v{M}, v{M2}")
            A(f"    {op} v{M}, v{M}, v{M2}")
        xreduce("v_max_f32")
        for i in range(4):
            A(f"    v_sub_f32 v{S+i}, v{S+i}, v{M}")
        for i in range(4):
            A(f"    v_mul_f32 v{S+i}, s62, v{S+i}")
        for i in range(4):
            A(f"    v_exp_f32 v{S+i}, v{S+i}")
        A("    s_nop 0")
        A(f"    v_add_f32 v{M}, v{S}, v{S+1}")
        A(f"    v_add_f32 v{M2}, v{S+2}, v{S+3}")
        A(f"    v_add_f32 v{M}, v{M}, v{M2}")
        xreduce("v_add_f32")
        A(f"    v_rcp_f32 v{M}, v{M}")
        A("    s_nop 0")
        for i in range(4):
            A(f"    v_mul_f32 v{S+i}, v{S+i}, v{M}")
        A(f"    v_cvt_pk_bf16_f32 v{PP}, v{S}, v{S+1}")
        A(f"    v_cvt_pk_bf16_f32 v{PP+1}, v{S+2}, v{S+3}")
    for i in range(32):
        A(f"    v_mov_b32 v{ACC+i}, 0")
    loop("vloop", False, ring2, BPM - ntail, win)
    if ntail:
        extra = [b for b in range(N) if b not in ring2][:dtail - 2]
        n = 2 * PER
        for b in extra:
            loads(b, 'V', n, wtail)
            n += PER
        loop("vtail", False, ring2 + extra, ntail, wtail)
    stamp()
    A("    s_nop 7")
    for e in range(8):
        a = ACC + 4 * e
        A(f"    v_cvt_pk_bf16_f32 v{X+2*e}, v{a}, v{a+1}")
        A(f"    v_cvt_pk_bf16_f32 v{X+2*e+1}, v{a+2}, v{a+3}")
    O0 = ACC
    for e in range(8):
        o = O0 + 4 * e
        A(f"    v_mfma_f32_16x16x16_bf16 v[{o}:{o+3}], v[{P}:{P+1}], v[{X+2*e}:{X+2*e+1}], 0")
    A("    s_waitcnt vmcnt(0)")
    O1 = BUF0
    for e in range(8):
        o = O1 + 4 * e
        A(f"    v_mfma_f32_16x16x16_bf16 v[{o}:{o+3}], v[{P+2}:{P+3}], v[{X+2*e}:{X+2*e+1}], 0")
    R = BUF0 + 32
    for tl, O in ((0, O0), (1, O1)):
        if tl == 1:
            A("    s_nop 3")
        for i in range(4):
            r = R + 16 * tl + 4 * i
            for p in range(4):
                A(f"    v_cvt_pk_bf16_f32 v{r+p}, v{O+4*(2*p)+i}, v{O+4*(2*p+1)+i}")
            so = "0" if tl == 0 else "s49"
            A(f"    buffer_store_dwordx4 v[{r}:{r+3}], v{VOFF_O}, s[{SO}:{SO+3}], {so} offen offset:{256*i}{of}")
    if ts:
        stamp()
        A("    s_getreg_b32 s60, hwreg(HW_REG_XCC_ID)")
        A("    s_getreg_b32 s61, hwreg(HW_REG_HW_ID)")
        A(f"    v_writelane_b32 v{VTS}, s60, 62")
        A(f"    v_writelane_b32 v{VTS}, s61, 63")
        A(f"    s_lshl_b32 s62, s2, 8")
        A("    s_add_u32 s58, s58, s62")
        A("    s_addc_u32 s59, s59, 0")
        A("    v_lshlrev_b32 v16, 2, v0")
        A(f"    global_store_dword v16, v{VTS}, s[58:59]")
    A("L_end:")
    A("    s_endpgm")
    A('.section .rodata,"a"')
    A(".p2align 6")
    A(f".amdhsa_kernel {NAME}_kernel")
    A(f"  .amdhsa_next_free_vgpr {NV}")
    A("  .amdhsa_next_free_sgpr 64")
    A(f"  .amdhsa_accum_offset {min(256,(NV+3)//4*4)}")
    A("  .amdhsa_group_segment_fixed_size 0")
    A("  .amdhsa_kernarg_size 64")
    A("  .amdhsa_user_sgpr_count 2")
    A("  .amdhsa_user_sgpr_kernarg_segment_ptr 1")
    A("  .amdhsa_system_sgpr_workgroup_id_x 1")
    A(".end_amdhsa_kernel")
    return "\n".join(L) + "\n"


if __name__ == "__main__":
    ap = argparse.ArgumentParser()
    for k, d in dict(win=12, ntail=0, dtail=2, wtail=0, ts=0, tsdiv=4, rot=0, ldsx=65536, qpos=0, efirst=0, nhead=0, dhead=2, whead=0, tsfine=0, warm=0, delay=0).items():
        ap.add_argument("--" + k, type=int, default=d)
    for k, d in dict(flags='nt', eflags='', qflags='nt', oflags='nt').items():
        ap.add_argument("--" + k, default=d)
    ap.add_argument("-o", default="-")
    a = vars(ap.parse_args())
    o = a.pop("o")
    s = gen(**a)
    if o == "-":
        sys.stdout.write(s)
    else:
        open(o, "w").write(s)
```

```python
import sys, argparse

NAME = "standalone__low_rank_proj_linformer__sampling"
HEADER = open('cdna_kernels/' + NAME + '.s.ref').read().split('; @launch')[0]


def gen(win=12, ntail=0, dtail=2, wtail=0, flags='nt', eflags='', qflags='nt', oflags='nt', ts=0, tsdiv=4, rot=0,
        ldsx=65536, qpos=0, efirst=0, nhead=0, dhead=2, whead=0, tsfine=0, warm=0, delay=0, until=0):
    L = []
    A = L.append
    N = max(2, dtail if ntail else 2, dhead if nhead else 2)
    BPM = 128
    lds = max(8192, ldsx)
    A(HEADER + f"; @launch grid=(512,1,1) block=(64,1,1) lds={lds}")
    A('.amdgcn_target "amdgcn-amd-amdhsa--gfx950"')
    A(".text")
    A(f".globl {NAME}_kernel")
    A(".p2align 8")
    A(f".type {NAME}_kernel,@function")
    A(f"{NAME}_kernel:")
    VOFF_D, VOFF_E, VLDS_Q, VOFF_O, VTS = 1, 2, 3, 4, 5
    ACC = 8
    T = [40, 44]
    P = 48
    X = 52
    Q = 68
    BUF0 = 84
    def bufd(b, i): return BUF0 + 36 * b + 4 * i
    def bufe(b): return BUF0 + 36 * b + 32
    NV = max(BUF0 + 36 * N, BUF0 + 64)
    assert NV <= 256, NV
    SD, SP, SQ, SO = 16, 20, 24, 28
    SVB, SFB = 36, 38
    SSEL0, SSEL1, SIT, SDOFF, SEOFF, SCNT, STS = 40, 41, 42, 43, 44, 47, 63
    ntf = (" " + flags) if flags else ""
    entf = (" " + eflags) if eflags else ""
    qf = (" " + qflags) if qflags else ""
    of = (" " + oflags) if oflags else ""
    uid = [0]
    def lab(p):
        uid[0] += 1
        return f"L_{p}{uid[0]}"

    def stamp(inloop=False):
        if not ts:
            return
        lbl = lab("ts")
        if inloop and tsdiv > 1:
            A(f"    s_and_b32 s52, s{SIT}, {tsdiv-1}")
            A(f"    s_cmp_lg_u32 s52, {tsdiv-1}")
            A(f"    s_cbranch_scc1 {lbl}")
        A("    s_memrealtime s[50:51]")
        A(f"    s_mov_b32 m0, s{STS}")
        A("    s_waitcnt lgkmcnt(0)")
        A(f"    v_writelane_b32 v{VTS}, s50, m0")
        A(f"    s_add_u32 s{STS}, s{STS}, 1")
        A(f"{lbl}:")

    A("    s_cmp_ge_u32 s2, 512")
    A("    s_cbranch_scc1 L_end")
    if ts:
        A(f"    s_mov_b32 s{STS}, 0")
        A(f"    v_mov_b32 v{VTS}, 0")
        stamp()
    if delay:
        A("    s_memrealtime s[50:51]")
        A("    s_waitcnt lgkmcnt(0)")
        A(f"    s_add_u32 s52, s50, {delay*100}")
        A("L_delay:")
        A("    s_sleep 8")
        A("    s_memrealtime s[50:51]")
        A("    s_waitcnt lgkmcnt(0)")
        A("    s_sub_u32 s53, s50, s52")
        A("    s_cmp_lt_i32 s53, 0")
        A("    s_cbranch_scc1 L_delay")
    if until:
        A("    s_memrealtime s[56:57]")
    A("    s_load_dwordx8 s[4:11], s[0:1], 0")
    A("    s_load_dwordx4 s[12:15], s[0:1], 32")
    if ts:
        A("    s_load_dwordx2 s[58:59], s[0:1], 56")
    A("    v_and_b32 v9, 15, v0")
    A("    v_lshrrev_b32 v10, 4, v0")
    A(f"    v_lshlrev_b32 v{VOFF_D}, 11, v10")
    A(f"    v_lshl_add_u32 v{VOFF_D}, v9, 4, v{VOFF_D}")
    A(f"    v_lshlrev_b32 v{VOFF_E}, 13, v9")
    A(f"    v_lshl_add_u32 v{VOFF_E}, v10, 4, v{VOFF_E}")
    A("    s_lshl_b32 s3, s2, 20")
    A("    s_lshl_b32 s48, s2, 13")
    A(f"    s_mov_b32 s{SD+2}, 0x100000")
    A(f"    s_mov_b32 s{SD+3}, 0x20000")
    A(f"    s_mov_b32 s{SP+2}, 0x20000")
    A(f"    s_mov_b32 s{SP+3}, 0x20000")
    if rot:
        A("    s_lshr_b32 s49, s2, 3")
        A(f"    s_mul_i32 s49, s49, {rot}")
        A(f"    s_and_b32 s49, s49, {BPM-1}")
        A(f"    s_lshl_b32 s{SDOFF}, s49, 13")
        A(f"    s_lshl_b32 s{SEOFF}, s49, 6")
    else:
        A(f"    s_mov_b32 s{SDOFF}, 0")
        A(f"    s_mov_b32 s{SEOFF}, 0")
    A(f"    s_mov_b32 s{SCNT}, 0")
    A("    s_waitcnt lgkmcnt(0)")
    if tsfine: stamp()
    A(f"    s_add_u32 s{SD}, s6, s3")
    A(f"    s_addc_u32 s{SD+1}, s7, 0")
    A(f"    s_mov_b32 s{SP}, s10")
    A(f"    s_mov_b32 s{SP+1}, s11")

    PER = 9
    def loads(b, check, older=0, w=0):
        n = older
        def eload():
            A(f"    buffer_load_dwordx4 v[{bufe(b)}:{bufe(b)+3}], v{VOFF_E}, s[{SP}:{SP+3}], s{SEOFF} offen{entf}")
        if efirst:
            eload(); n += 1
        for i in range(8):
            r = bufd(b, i)
            off = f" offset:{i*256}" if i else ""
            if w and n >= w:
                A(f"    s_waitcnt vmcnt({w-1})")
            A(f"    buffer_load_dwordx4 v[{r}:{r+3}], v{VOFF_D}, s[{SD}:{SD+3}], s{SDOFF} offen{off}{ntf}")
            n += 1
        if not efirst:
            eload()
        A(f"    s_add_u32 s{SDOFF}, s{SDOFF}, 0x2000")
        A(f"    s_add_u32 s{SEOFF}, s{SEOFF}, 64")
        A(f"    s_and_b32 s{SDOFF}, s{SDOFF}, 0xfffff")
        A(f"    s_and_b32 s{SEOFF}, s{SEOFF}, 0x1fff")
        A(f"    s_add_u32 s{SCNT}, s{SCNT}, 1")
        if check == 'K':
            A(f"    s_cmp_eq_u32 s{SCNT}, 128")
            A(f"    s_cselect_b64 s[{SD}:{SD+1}], s[{SVB}:{SVB+1}], s[{SD}:{SD+1}]")
            A(f"    s_cselect_b64 s[{SP}:{SP+1}], s[{SFB}:{SFB+1}], s[{SP}:{SP+1}]")
        elif check == 'V':
            A(f"    s_cmp_eq_u32 s{SCNT}, 256")
            A(f"    s_cselect_b32 s{SD+2}, 0, s{SD+2}")
            A(f"    s_cselect_b32 s{SP+2}, 0, s{SP+2}")

    def perms(b, e):
        w, h = e >> 1, e & 1
        t = T[e & 1]
        sel = SSEL1 if h else SSEL0
        for q in range(4):
            lo_ = bufd(b, 2 * q) + w
            hi_ = bufd(b, 2 * q + 1) + w
            A(f"    v_perm_b32 v{t+q}, v{hi_}, v{lo_}, s{sel}")

    def mfma(b, e, isK):
        t = T[e & 1]
        a = ACC + 4 * e
        eb = bufe(b)
        if isK:
            A(f"    v_mfma_f32_16x16x32_bf16 v[{a}:{a+3}], v[{t}:{t+3}], v[{eb}:{eb+3}], v[{a}:{a+3}]")
        else:
            A(f"    v_mfma_f32_16x16x32_bf16 v[{a}:{a+3}], v[{eb}:{eb+3}], v[{t}:{t+3}], v[{a}:{a+3}]")

    def compute(b, isK):
        perms(b, 0)
        for e in range(8):
            if e < 7:
                perms(b, e + 1)
            else:
                A("    s_nop 1")
            mfma(b, e, isK)

    def qdma():
        A(f"    s_add_u32 s{SQ}, s4, s48")
        A(f"    s_addc_u32 s{SQ+1}, s5, 0")
        A(f"    s_mov_b32 s{SQ+2}, 0x2000")
        A(f"    s_mov_b32 s{SQ+3}, 0x20000")
        A("    s_mov_b32 m0, 0")
        A(f"    v_lshlrev_b32 v6, 4, v0")
        for j in range(4):
            off = f" offset:{j*1024}" if j else ""
            A(f"    buffer_load_dwordx4 v6, s[{SQ}:{SQ+3}], 0 offen{off}{qf} lds")
        A("    s_mov_b32 m0, s49")
        A("    s_nop 0")
        for j in range(4):
            off = f" offset:{j*1024}" if j else ""
            A(f"    buffer_load_dwordx4 v6, s[{SQ}:{SQ+3}], s49 offen{off}{qf} lds")

    d0 = dhead if nhead else 2
    for b in range(d0):
        loads(b, None)
    A("    s_movk_i32 s49, 0x1000")
    if qpos == 0:
        qdma()
    A(f"    s_add_u32 s{SVB}, s8, s3")
    A(f"    s_addc_u32 s{SVB+1}, s9, 0")
    A(f"    s_mov_b32 s{SFB}, s12")
    A(f"    s_mov_b32 s{SFB+1}, s13")
    A(f"    s_add_u32 s{SO}, s14, s48")
    A(f"    s_addc_u32 s{SO+1}, s15, 0")
    A(f"    s_mov_b32 s{SO+2}, 0x2000")
    A(f"    s_mov_b32 s{SO+3}, 0x20000")
    if warm:
        A(f"    s_load_dword s53, s[{SVB}:{SVB+1}], 0")
        A(f"    s_load_dword s54, s[{SFB}:{SFB+1}], 0")
        A(f"    s_load_dword s55, s[{SO}:{SO+1}], 0")
    A(f"    s_mov_b32 s{SSEL0}, 0x05040100")
    A(f"    s_mov_b32 s{SSEL1}, 0x07060302")
    A(f"    v_lshlrev_b32 v{VLDS_Q}, 8, v9")
    A(f"    v_lshl_add_u32 v{VLDS_Q}, v10, 6, v{VLDS_Q}")
    A(f"    v_lshlrev_b32 v{VOFF_O}, 10, v10")
    A(f"    v_lshl_add_u32 v{VOFF_O}, v9, 4, v{VOFF_O}")
    for i in range(32):
        A(f"    v_mov_b32 v{ACC+i}, 0")

    def loop(nm, isK, ring, nblocks, w):
        D = len(ring)
        assert nblocks % D == 0, (nm, nblocks, D)
        if nblocks == 0:
            return
        chk = 'K' if isK else 'V'
        A(f"    s_mov_b32 s{SIT}, 0")
        A(f"L_{nm}:")
        for b in ring:
            A(f"    s_waitcnt vmcnt({PER*(D-1)})")
            compute(b, isK)
            loads(b, chk, PER * (D - 1), w)
        stamp(True)
        A(f"    s_add_u32 s{SIT}, s{SIT}, 1")
        A(f"    s_cmp_lt_u32 s{SIT}, {nblocks // D}")
        A(f"    s_cbranch_scc1 L_{nm}")

    done = 0
    ring2 = [0, 1]
    if tsfine:
        stamp()
        nq = 8 if qpos == 0 else 0
        A(f"    s_waitcnt vmcnt({17+nq})")
        stamp()
        A(f"    s_waitcnt vmcnt({10+nq})")
        stamp()
        A(f"    s_waitcnt vmcnt({9+nq})")
        stamp()
        A(f"    s_waitcnt vmcnt({nq})")
        stamp()
        A(f"    s_waitcnt vmcnt(0)")
        stamp()
        for k in range(8):
            for b in ring2:
                A(f"    s_waitcnt vmcnt({PER})")
                compute(b, True)
                loads(b, 'K', PER, win)
            stamp()
        done = 16
    if nhead:
        ringh = list(range(dhead))
        loop("khead", True, ringh, nhead, whead)
        done += nhead
        for k in range(dhead - 2):
            A(f"    s_waitcnt vmcnt({PER*(dhead-1-k)})")
            compute(ringh[k], True)
            done += 1
        ring2 = ringh[dhead - 2:]
    if qpos:
        nq = qpos
        loop("kpre", True, ring2, nq, win)
        done += nq
        qdma()
    loop("kloop", True, ring2, BPM - done, win)
    if warm:
        A("    s_waitcnt lgkmcnt(0)")
    A("    s_nop 7")
    for i in range(4):
        for p in range(4):
            A(f"    v_cvt_pk_bf16_f32 v{X+4*i+p}, v{ACC+4*(2*p)+i}, v{ACC+4*(2*p+1)+i}")
    A("    s_mov_b32 s60, 0x3db504f3")
    A("    s_mov_b32 s61, 0xffff0000")
    A("    s_mov_b32 s62, 0x3fb8aa3b")
    for i in range(4):
        A(f"    ds_read_b128 v[{Q+4*i}:{Q+4*i+3}], v{VLDS_Q} offset:{16*i}")
    for i in range(4):
        A(f"    ds_read_b128 v[{ACC+4*i}:{ACC+4*i+3}], v{VLDS_Q} offset:{4096+16*i}")
    S0, S1 = ACC + 16, ACC + 20
    U0, U1 = ACC + 24, ACC + 28
    A(f"    s_waitcnt lgkmcnt(4)")
    for i in range(4):
        c = "0" if i == 0 else f"v[{S0}:{S0+3}]"
        A(f"    v_mfma_f32_16x16x32_bf16 v[{S0}:{S0+3}], v[{X+4*i}:{X+4*i+3}], v[{Q+4*i}:{Q+4*i+3}], {c}")
    A(f"    s_waitcnt lgkmcnt(0)")
    for i in range(4):
        c = "0" if i == 0 else f"v[{S1}:{S1+3}]"
        A(f"    v_mfma_f32_16x16x32_bf16 v[{S1}:{S1+3}], v[{X+4*i}:{X+4*i+3}], v[{ACC+4*i}:{ACC+4*i+3}], {c}")
    A("    s_nop 7")
    for S, U, PP in ((S0, U0, P), (S1, U1, P + 2)):
        A(f"    v_cvt_pk_bf16_f32 v{U}, v{S}, v{S+1}")
        A(f"    v_cvt_pk_bf16_f32 v{U+1}, v{S+2}, v{S+3}")
        A(f"    v_lshlrev_b32 v{S}, 16, v{U}")
        A(f"    v_and_b32 v{S+1}, s61, v{U}")
        A(f"    v_lshlrev_b32 v{S+2}, 16, v{U+1}")
        A(f"    v_and_b32 v{S+3}, s61, v{U+1}")
        for i in range(4):
            A(f"    v_mul_f32 v{S+i}, s60, v{S+i}")
        A(f"    v_cvt_pk_bf16_f32 v{U}, v{S}, v{S+1}")
        A(f"    v_cvt_pk_bf16_f32 v{U+1}, v{S+2}, v{S+3}")
        A(f"    v_lshlrev_b32 v{S}, 16, v{U}")
        A(f"    v_and_b32 v{S+1}, s61, v{U}")
        A(f"    v_lshlrev_b32 v{S+2}, 16, v{U+1}")
        A(f"    v_and_b32 v{S+3}, s61, v{U+1}")
        M, M2 = U, U + 1
        A(f"    v_max_f32 v{M}, v{S}, v{S+1}")
        A(f"    v_max3_f32 v{M}, v{M}, v{S+2}, v{S+3}")
        def xreduce(op):
            A(f"    v_mov_b32 v{M2}, v{M}")
            A("    s_nop 1")
            A(f"    v_permlane16_swap_b32 v{M}, v{M2}")
            A(f"    {op} v{M}, v{M}, v{M2}")
            A(f"    v_mov_b32 v{M2}, v{M}")
            A("    s_nop 1")
            A(f"    v_permlane32_swap_b32 v{M}, v{M2}")
            A(f"    {op} v{M}, v{M}, v{M2}")
        xreduce("v_max_f32")
        for i in range(4):
            A(f"    v_sub_f32 v{S+i}, v{S+i}, v{M}")
        for i in range(4):
            A(f"    v_mul_f32 v{S+i}, s62, v{S+i}")
        for i in range(4):
            A(f"    v_exp_f32 v{S+i}, v{S+i}")
        A("    s_nop 0")
        A(f"    v_add_f32 v{M}, v{S}, v{S+1}")
        A(f"    v_add_f32 v{M2}, v{S+2}, v{S+3}")
        A(f"    v_add_f32 v{M}, v{M}, v{M2}")
        xreduce("v_add_f32")
        A(f"    v_rcp_f32 v{M}, v{M}")
        A("    s_nop 0")
        for i in range(4):
            A(f"    v_mul_f32 v{S+i}, v{S+i}, v{M}")
        A(f"    v_cvt_pk_bf16_f32 v{PP}, v{S}, v{S+1}")
        A(f"    v_cvt_pk_bf16_f32 v{PP+1}, v{S+2}, v{S+3}")
    for i in range(32):
        A(f"    v_mov_b32 v{ACC+i}, 0")
    loop("vloop", False, ring2, BPM - ntail, win)
    if ntail:
        extra = [b for b in range(N) if b not in ring2][:dtail - 2]
        n = 2 * PER
        for b in extra:
            loads(b, 'V', n, wtail)
            n += PER
        loop("vtail", False, ring2 + extra, ntail, wtail)
    stamp()
    A("    s_nop 7")
    for e in range(8):
        a = ACC + 4 * e
        A(f"    v_cvt_pk_bf16_f32 v{X+2*e}, v{a}, v{a+1}")
        A(f"    v_cvt_pk_bf16_f32 v{X+2*e+1}, v{a+2}, v{a+3}")
    O0 = ACC
    for e in range(8):
        o = O0 + 4 * e
        A(f"    v_mfma_f32_16x16x16_bf16 v[{o}:{o+3}], v[{P}:{P+1}], v[{X+2*e}:{X+2*e+1}], 0")
    A("    s_waitcnt vmcnt(0)")
    O1 = BUF0
    for e in range(8):
        o = O1 + 4 * e
        A(f"    v_mfma_f32_16x16x16_bf16 v[{o}:{o+3}], v[{P+2}:{P+3}], v[{X+2*e}:{X+2*e+1}], 0")
    R = BUF0 + 32
    for tl, O in ((0, O0), (1, O1)):
        if tl == 1:
            A("    s_nop 3")
        for i in range(4):
            r = R + 16 * tl + 4 * i
            for p in range(4):
                A(f"    v_cvt_pk_bf16_f32 v{r+p}, v{O+4*(2*p)+i}, v{O+4*(2*p+1)+i}")
            so = "0" if tl == 0 else "s49"
            A(f"    buffer_store_dwordx4 v[{r}:{r+3}], v{VOFF_O}, s[{SO}:{SO+3}], {so} offen offset:{256*i}{of}")
    if ts:
        stamp()
        A("    s_getreg_b32 s60, hwreg(HW_REG_XCC_ID)")
        A("    s_getreg_b32 s61, hwreg(HW_REG_HW_ID)")
        A(f"    v_writelane_b32 v{VTS}, s60, 62")
        A(f"    v_writelane_b32 v{VTS}, s61, 63")
        A(f"    s_lshl_b32 s62, s2, 8")
        A("    s_add_u32 s58, s58, s62")
        A("    s_addc_u32 s59, s59, 0")
        A("    v_lshlrev_b32 v16, 2, v0")
        A(f"    global_store_dword v16, v{VTS}, s[58:59]")
    if until:
        A(f"    s_add_u32 s52, s56, {until*100}")
        A("L_until:")
        A("    s_memrealtime s[50:51]")
        A("    s_waitcnt lgkmcnt(0)")
        A("    s_sub_u32 s53, s50, s52")
        A("    s_cmp_lt_i32 s53, 0")
        A("    s_cbranch_scc1 L_until")
    A("L_end:")
    A("    s_endpgm")
    A('.section .rodata,"a"')
    A(".p2align 6")
    A(f".amdhsa_kernel {NAME}_kernel")
    A(f"  .amdhsa_next_free_vgpr {NV}")
    A("  .amdhsa_next_free_sgpr 64")
    A(f"  .amdhsa_accum_offset {min(256,(NV+3)//4*4)}")
    A("  .amdhsa_group_segment_fixed_size 0")
    A("  .amdhsa_kernarg_size 64")
    A("  .amdhsa_user_sgpr_count 2")
    A("  .amdhsa_user_sgpr_kernarg_segment_ptr 1")
    A("  .amdhsa_system_sgpr_workgroup_id_x 1")
    A(".end_amdhsa_kernel")
    return "\n".join(L) + "\n"


if __name__ == "__main__":
    ap = argparse.ArgumentParser()
    for k, d in dict(win=12, ntail=0, dtail=2, wtail=0, ts=0, tsdiv=4, rot=0, ldsx=65536, qpos=0, efirst=0, nhead=0, dhead=2, whead=0, tsfine=0, warm=0, delay=0, until=0).items():
        ap.add_argument("--" + k, type=int, default=d)
    for k, d in dict(flags='nt', eflags='', qflags='nt', oflags='nt').items():
        ap.add_argument("--" + k, default=d)
    ap.add_argument("-o", default="-")
    a = vars(ap.parse_args())
    o = a.pop("o")
    s = gen(**a)
    if o == "-":
        sys.stdout.write(s)
    else:
        open(o, "w").write(s)
```

```python
import sys, argparse

NAME = "standalone__low_rank_proj_linformer__sampling"
HEADER = open('cdna_kernels/' + NAME + '.s.ref').read().split('; @launch')[0]


def gen(W=2, NB=2, win=12, flags='nt', eflags='', qflags='nt', oflags='nt', ts=0, tsdiv=4, ldsx=98304, bar=0, warm=0, defer=1, nostore=0, skipl=1):
    L = []
    A = L.append
    BPM = 128 // W
    SLOT = W * 8192
    QBASE = 2 * SLOT
    lds = max(QBASE + 16384, ldsx)
    A(HEADER + f"; @launch grid=(256,1,1) block=({64*W},1,1) lds={lds}")
    A('.amdgcn_target "amdgcn-amd-amdhsa--gfx950"')
    A(".text")
    A(f".globl {NAME}_kernel")
    A(".p2align 8")
    A(f".type {NAME}_kernel,@function")
    A(f"{NAME}_kernel:")
    VOFF_D, VOFF_E, VLDS_Q, VOFF_O, VTS, VLDS_W, VLDS_R = 1, 2, 3, 4, 5, 6, 7
    ACC = 8
    T = [40, 44]
    P0, P1, PT = 48, 50, 52
    X = 56
    Q = 72
    Y = 88
    BUF0 = 120
    def bufd(b, i): return BUF0 + 36 * b + 4 * i
    def bufe(b): return BUF0 + 36 * b + 32
    NV = BUF0 + 36 * NB
    assert NV <= 256, NV
    SD, SP, SQ, SO = 16, 20, 24, 28
    SVB, SFB = 36, 38
    SSEL0, SSEL1, SIT, SDOFF, SEOFF, SWAVE, SMAT, SCNT, SOOFF, STS = 40, 41, 42, 43, 44, 45, 46, 47, 49, 63
    ntf = (" " + flags) if flags else ""
    entf = (" " + eflags) if eflags else ""
    qf = (" " + qflags) if qflags else ""
    of = (" " + oflags) if oflags else ""
    uid = [0]
    def lab(p):
        uid[0] += 1
        return f"L_{p}{uid[0]}"

    def stamp(inloop=False):
        if not ts:
            return
        lbl = lab("ts")
        if inloop and tsdiv > 1:
            A(f"    s_and_b32 s52, s{SIT}, {tsdiv-1}")
            A(f"    s_cmp_lg_u32 s52, {tsdiv-1}")
            A(f"    s_cbranch_scc1 {lbl}")
        A("    s_memrealtime s[50:51]")
        A(f"    s_mov_b32 m0, s{STS}")
        A("    s_waitcnt lgkmcnt(0)")
        A(f"    v_writelane_b32 v{VTS}, s50, m0")
        A(f"    s_add_u32 s{STS}, s{STS}, 1")
        A(f"{lbl}:")

    A("    s_cmp_ge_u32 s2, 256")
    A("    s_cbranch_scc1 L_end")
    if ts:
        A(f"    s_mov_b32 s{STS}, 0")
        A(f"    v_mov_b32 v{VTS}, 0")
        stamp()
    A("    s_load_dwordx8 s[4:11], s[0:1], 0")
    A("    s_load_dwordx4 s[12:15], s[0:1], 32")
    if ts:
        A("    s_load_dwordx2 s[58:59], s[0:1], 56")
    A("    v_lshrrev_b32 v8, 6, v0")
    A("    v_and_b32 v9, 15, v0")
    A("    v_bfe_u32 v10, v0, 4, 2")
    A(f"    v_readfirstlane_b32 s{SWAVE}, v8")
    A(f"    v_lshlrev_b32 v{VOFF_D}, 13, v8")
    A(f"    v_lshl_add_u32 v{VOFF_D}, v10, 11, v{VOFF_D}")
    A(f"    v_lshl_add_u32 v{VOFF_D}, v9, 4, v{VOFF_D}")
    A(f"    v_lshlrev_b32 v{VOFF_E}, 13, v9")
    A(f"    v_lshl_add_u32 v{VOFF_E}, v10, 4, v{VOFF_E}")
    A(f"    v_lshl_add_u32 v{VOFF_E}, v8, 6, v{VOFF_E}")
    A("    s_lshl_b32 s3, s2, 21")
    A("    s_lshl_b32 s48, s2, 14")
    A(f"    s_mov_b32 s{SD+2}, 0x200000")
    A(f"    s_mov_b32 s{SD+3}, 0x20000")
    A(f"    s_mov_b32 s{SP+2}, 0x20000")
    A(f"    s_mov_b32 s{SP+3}, 0x20000")
    A(f"    s_mov_b32 s{SDOFF}, 0")
    A(f"    s_mov_b32 s{SEOFF}, 0")
    A(f"    s_mov_b32 s{SCNT}, 0")
    A("    s_waitcnt lgkmcnt(0)")
    A(f"    s_add_u32 s{SD}, s6, s3")
    A(f"    s_addc_u32 s{SD+1}, s7, 0")
    A(f"    s_mov_b32 s{SP}, s10")
    A(f"    s_mov_b32 s{SP+1}, s11")

    PER = 9
    def loads(b, check, older=0, w=0):
        n = older
        for i in range(8):
            r = bufd(b, i)
            off = f" offset:{i*256}" if i else ""
            if w and n >= w:
                A(f"    s_waitcnt vmcnt({w-1})")
            A(f"    buffer_load_dwordx4 v[{r}:{r+3}], v{VOFF_D}, s[{SD}:{SD+3}], s{SDOFF} offen{off}{ntf}")
            n += 1
        A(f"    buffer_load_dwordx4 v[{bufe(b)}:{bufe(b)+3}], v{VOFF_E}, s[{SP}:{SP+3}], s{SEOFF} offen{entf}")
        A(f"    s_add_u32 s{SDOFF}, s{SDOFF}, {hex(W*0x2000)}")
        A(f"    s_add_u32 s{SEOFF}, s{SEOFF}, {W*64}")
        A(f"    s_and_b32 s{SDOFF}, s{SDOFF}, 0x1fffff")
        A(f"    s_and_b32 s{SEOFF}, s{SEOFF}, 0x1fff")
        A(f"    s_add_u32 s{SCNT}, s{SCNT}, 1")
        if check == 'K':
            A(f"    s_cmp_eq_u32 s{SCNT}, {2*BPM}")
            A(f"    s_cselect_b64 s[{SD}:{SD+1}], s[{SVB}:{SVB+1}], s[{SD}:{SD+1}]")
            A(f"    s_cselect_b64 s[{SP}:{SP+1}], s[{SFB}:{SFB+1}], s[{SP}:{SP+1}]")
        elif check == 'V':
            A(f"    s_cmp_eq_u32 s{SCNT}, {4*BPM}")
            A(f"    s_cselect_b32 s{SD+2}, 0, s{SD+2}")
            A(f"    s_cselect_b32 s{SP+2}, 0, s{SP+2}")

    def perms(b, e):
        w, h = e >> 1, e & 1
        t = T[e & 1]
        sel = SSEL1 if h else SSEL0
        for q in range(4):
            lo_ = bufd(b, 2 * q) + w
            hi_ = bufd(b, 2 * q + 1) + w
            A(f"    v_perm_b32 v{t+q}, v{hi_}, v{lo_}, s{sel}")

    def mfma(b, e, isK):
        t = T[e & 1]
        a = ACC + 4 * e
        eb = bufe(b)
        if isK:
            A(f"    v_mfma_f32_16x16x32_bf16 v[{a}:{a+3}], v[{t}:{t+3}], v[{eb}:{eb+3}], v[{a}:{a+3}]")
        else:
            A(f"    v_mfma_f32_16x16x32_bf16 v[{a}:{a+3}], v[{eb}:{eb+3}], v[{t}:{t+3}], v[{a}:{a+3}]")

    def compute(b, isK):
        perms(b, 0)
        for e in range(8):
            if e < 7:
                perms(b, e + 1)
            else:
                A("    s_nop 1")
            mfma(b, e, isK)

    for b in range(NB):
        loads(b, None)
    NQ = 16 // W
    A(f"    s_add_u32 s{SQ}, s4, s48")
    A(f"    s_addc_u32 s{SQ+1}, s5, 0")
    A(f"    s_mov_b32 s{SQ+2}, 0x4000")
    A(f"    s_mov_b32 s{SQ+3}, 0x20000")
    A(f"    s_mul_i32 s53, s{SWAVE}, {NQ*1024}")
    A(f"    v_and_b32 v12, 63, v0")
    A(f"    v_lshlrev_b32 v{VLDS_R}, 4, v12")
    for j0 in range(0, NQ, 4):
        A(f"    s_add_u32 s54, s53, {QBASE}")
        A("    s_mov_b32 m0, s54")
        A("    s_nop 0")
        for j in range(4):
            off = f" offset:{j*1024}" if j else ""
            A(f"    buffer_load_dwordx4 v{VLDS_R}, s[{SQ}:{SQ+3}], s53 offen{off}{qf} lds")
        A(f"    s_add_u32 s53, s53, 0x1000")
    A(f"    s_add_u32 s{SVB}, s8, s3")
    A(f"    s_addc_u32 s{SVB+1}, s9, 0")
    A(f"    s_mov_b32 s{SFB}, s12")
    A(f"    s_mov_b32 s{SFB+1}, s13")
    A(f"    s_add_u32 s{SO}, s14, s48")
    A(f"    s_addc_u32 s{SO+1}, s15, 0")
    A(f"    s_mov_b32 s{SO+2}, 0x4000")
    A(f"    s_mov_b32 s{SO+3}, 0x20000")
    if warm:
        A(f"    s_load_dword s53, s[{SVB}:{SVB+1}], 0")
        A(f"    s_load_dword s54, s[{SFB}:{SFB+1}], 0")
        A(f"    s_load_dword s55, s[{SO}:{SO+1}], 0")
    A(f"    s_mov_b32 s{SSEL0}, 0x05040100")
    A(f"    s_mov_b32 s{SSEL1}, 0x07060302")
    A("    s_mov_b32 s60, 0x3db504f3")
    A("    s_mov_b32 s61, 0xffff0000")
    A("    s_mov_b32 s62, 0x3fb8aa3b")
    A(f"    v_lshl_add_u32 v{VLDS_W}, v8, 13, v{VLDS_R}")
    if W == 2:
        A(f"    v_xor_b32 v{VLDS_R}, 0x2000, v{VLDS_W}")
    A("    v_and_b32 v11, 1, v8")
    A(f"    v_lshlrev_b32 v{VLDS_Q}, 12, v11")
    A(f"    v_lshl_add_u32 v{VLDS_Q}, v9, 8, v{VLDS_Q}")
    A(f"    v_lshl_add_u32 v{VLDS_Q}, v10, 6, v{VLDS_Q}")
    A(f"    v_add_u32 v{VLDS_Q}, {QBASE}, v{VLDS_Q}")
    A(f"    v_lshlrev_b32 v{VOFF_O}, 12, v11")
    A(f"    v_lshl_add_u32 v{VOFF_O}, v10, 10, v{VOFF_O}")
    A(f"    v_lshl_add_u32 v{VOFF_O}, v9, 4, v{VOFF_O}")
    A(f"    s_mov_b32 s{SOOFF}, 0")

    def zero_acc():
        for i in range(32):
            A(f"    v_mov_b32 v{ACC+i}, 0")

    def loop(nm, isK):
        chk = 'K' if isK else 'V'
        A(f"    s_mov_b32 s{SIT}, 0")
        A(f"L_{nm}:")
        stubs = []
        for b in range(NB):
            A(f"    s_waitcnt vmcnt({PER*(NB-1)})")
            compute(b, isK)
            if skipl and not isK:
                stub, back = lab("stub"), lab("back")
                A(f"    s_cmp_eq_u32 s{SCNT}, {4*BPM}")
                A(f"    s_cbranch_scc1 {stub if b < NB-1 else back}")
                loads(b, None, PER * (NB - 1), win)
                A(f"{back}:")
                if b < NB - 1:
                    stubs.append((stub, back, PER * (NB - 2 - b)))
            else:
                loads(b, chk, PER * (NB - 1), win)
        stamp(True)
        A(f"    s_add_u32 s{SIT}, s{SIT}, 1")
        if bar:
            sk = lab("nb")
            if bar > 1:
                A(f"    s_and_b32 s52, s{SIT}, {bar-1}")
                A(f"    s_cbranch_scc1 {sk}")
            A("    s_barrier")
            A(f"{sk}:")
        A(f"    s_cmp_lt_u32 s{SIT}, {BPM // NB}")
        A(f"    s_cbranch_scc1 L_{nm}")
        if stubs:
            after = lab("after")
            A(f"    s_branch {after}")
            for stub, back, n in stubs:
                A(f"{stub}:")
                A(f"    s_waitcnt vmcnt({n})")
                A(f"    s_branch {back}")
            A(f"{after}:")

    def exchange(skip):
        A("    s_nop 7")
        for e in range(8):
            a = ACC + 4 * e
            A(f"    ds_write_b128 v{VLDS_W}, v[{a}:{a+3}] offset:{e*1024}")
        A("    s_waitcnt lgkmcnt(0)")
        A("    s_barrier")
        if W == 2:
            for e in range(8):
                A(f"    ds_read_b128 v[{Y+4*e}:{Y+4*e+3}], v{VLDS_R} offset:{e*1024}")
            for e in range(8):
                a, t = ACC + 4 * e, Y + 4 * e
                A(f"    s_waitcnt lgkmcnt({7-e})")
                A(f"    v_pk_add_f32 v[{a}:{a+1}], v[{a}:{a+1}], v[{t}:{t+1}]")
                A(f"    v_pk_add_f32 v[{a+2}:{a+3}], v[{a+2}:{a+3}], v[{t+2}:{t+3}]")
        else:
            A(f"    s_lshr_b32 s52, s{SWAVE}, 1")
            A(f"    s_cmp_lg_u32 s52, s{SMAT}")
            A(f"    s_cbranch_scc1 {skip}")
            for e in range(8):
                a = ACC + 4 * e
                A(f"    ds_read_b128 v[{a}:{a+3}], v{VLDS_R} offset:{e*1024}")
            reads = [(p, e) for p in range(1, W) for e in range(8)]
            temps = [Y + 4 * k for k in range(7)]
            def issue(k):
                p, e = reads[k]
                t = temps[k % 7]
                A(f"    ds_read_b128 v[{t}:{t+3}], v{VLDS_R} offset:{p*8192 + e*1024}")
            for k in range(7):
                issue(k)
            issued = 7
            for k, (p, e) in enumerate(reads):
                A(f"    s_waitcnt lgkmcnt({issued - k - 1})")
                t = temps[k % 7]
                a = ACC + 4 * e
                A(f"    v_pk_add_f32 v[{a}:{a+1}], v[{a}:{a+1}], v[{t}:{t+1}]")
                A(f"    v_pk_add_f32 v[{a+2}:{a+3}], v[{a+2}:{a+3}], v[{t+2}:{t+3}]")
                if issued < len(reads):
                    issue(issued)
                    issued += 1

    def next_slot():
        A(f"    v_xor_b32 v{VLDS_W}, {SLOT}, v{VLDS_W}")
        A(f"    v_xor_b32 v{VLDS_R}, {SLOT}, v{VLDS_R}")

    A(f"    s_mov_b32 s{SMAT}, 0")
    A("L_kouter:")
    zero_acc()
    loop("kloop", True)
    exchange("L_kskip")
    for i in range(4):
        A(f"    ds_read_b128 v[{Q+4*i}:{Q+4*i+3}], v{VLDS_Q} offset:{16*i}")
    for i in range(4):
        for p in range(4):
            A(f"    v_cvt_pk_bf16_f32 v{X+4*i+p}, v{ACC+4*(2*p)+i}, v{ACC+4*(2*p+1)+i}")
    S, U = T[0], T[1]
    A(f"    s_waitcnt lgkmcnt(0)")
    for i in range(4):
        c = "0" if i == 0 else f"v[{S}:{S+3}]"
        A(f"    v_mfma_f32_16x16x32_bf16 v[{S}:{S+3}], v[{X+4*i}:{X+4*i+3}], v[{Q+4*i}:{Q+4*i+3}], {c}")
    A("    s_nop 7")
    A(f"    v_cvt_pk_bf16_f32 v{U}, v{S}, v{S+1}")
    A(f"    v_cvt_pk_bf16_f32 v{U+1}, v{S+2}, v{S+3}")
    A(f"    v_lshlrev_b32 v{S}, 16, v{U}")
    A(f"    v_and_b32 v{S+1}, s61, v{U}")
    A(f"    v_lshlrev_b32 v{S+2}, 16, v{U+1}")
    A(f"    v_and_b32 v{S+3}, s61, v{U+1}")
    for i in range(4):
        A(f"    v_mul_f32 v{S+i}, s60, v{S+i}")
    A(f"    v_cvt_pk_bf16_f32 v{U}, v{S}, v{S+1}")
    A(f"    v_cvt_pk_bf16_f32 v{U+1}, v{S+2}, v{S+3}")
    A(f"    v_lshlrev_b32 v{S}, 16, v{U}")
    A(f"    v_and_b32 v{S+1}, s61, v{U}")
    A(f"    v_lshlrev_b32 v{S+2}, 16, v{U+1}")
    A(f"    v_and_b32 v{S+3}, s61, v{U+1}")
    M, M2 = U, U + 1
    A(f"    v_max_f32 v{M}, v{S}, v{S+1}")
    A(f"    v_max3_f32 v{M}, v{M}, v{S+2}, v{S+3}")
    def xreduce(op):
        A(f"    v_mov_b32 v{M2}, v{M}")
        A("    s_nop 1")
        A(f"    v_permlane16_swap_b32 v{M}, v{M2}")
        A(f"    {op} v{M}, v{M}, v{M2}")
        A(f"    v_mov_b32 v{M2}, v{M}")
        A("    s_nop 1")
        A(f"    v_permlane32_swap_b32 v{M}, v{M2}")
        A(f"    {op} v{M}, v{M}, v{M2}")
    xreduce("v_max_f32")
    for i in range(4):
        A(f"    v_sub_f32 v{S+i}, v{S+i}, v{M}")
    for i in range(4):
        A(f"    v_mul_f32 v{S+i}, s62, v{S+i}")
    for i in range(4):
        A(f"    v_exp_f32 v{S+i}, v{S+i}")
    A("    s_nop 0")
    A(f"    v_add_f32 v{M}, v{S}, v{S+1}")
    A(f"    v_add_f32 v{M2}, v{S+2}, v{S+3}")
    A(f"    v_add_f32 v{M}, v{M}, v{M2}")
    xreduce("v_add_f32")
    A(f"    v_rcp_f32 v{M}, v{M}")
    A("    s_nop 0")
    for i in range(4):
        A(f"    v_mul_f32 v{S+i}, v{S+i}, v{M}")
    A(f"    v_mov_b32 v{P0}, v{P1}")
    A(f"    v_mov_b32 v{P0+1}, v{P1+1}")
    A(f"    v_cvt_pk_bf16_f32 v{P1}, v{S}, v{S+1}")
    A(f"    v_cvt_pk_bf16_f32 v{P1+1}, v{S+2}, v{S+3}")
    if W == 4:
        A(f"    v_mov_b32 v{P0}, v{P1}")
        A(f"    v_mov_b32 v{P0+1}, v{P1+1}")
    A("L_kskip:")
    next_slot()
    A(f"    v_add_u32 v{VLDS_Q}, 0x2000, v{VLDS_Q}")
    A(f"    s_add_u32 s{SMAT}, s{SMAT}, 1")
    A(f"    s_cmp_lt_u32 s{SMAT}, 2")
    A("    s_cbranch_scc1 L_kouter")
    A(f"    s_mov_b32 s{SMAT}, 0")
    A("L_vouter:")
    zero_acc()
    loop("vloop", False)
    exchange("L_vskip")
    for e in range(8):
        a = ACC + 4 * e
        A(f"    v_cvt_pk_bf16_f32 v{X+2*e}, v{a}, v{a+1}")
        A(f"    v_cvt_pk_bf16_f32 v{X+2*e+1}, v{a+2}, v{a+3}")
    A("    s_nop 1")
    for e in range(8):
        o = Y + 4 * e
        A(f"    v_mfma_f32_16x16x16_bf16 v[{o}:{o+3}], v[{P0}:{P0+1}], v[{X+2*e}:{X+2*e+1}], 0")
    A("    s_nop 7")
    if not defer:
        for i in range(4):
            r = Q + 4 * i
            for p in range(4):
                A(f"    v_cvt_pk_bf16_f32 v{r+p}, v{Y+4*(2*p)+i}, v{Y+4*(2*p+1)+i}")
            A(f"    buffer_store_dwordx4 v[{r}:{r+3}], v{VOFF_O}, s[{SO}:{SO+3}], s{SOOFF} offen offset:{256*i}{of}")
        A(f"    v_mov_b32 v{P0}, v{P1}")
        A(f"    v_mov_b32 v{P0+1}, v{P1+1}")
    else:
        assert W == 2
        A(f"    s_cmp_lg_u32 s{SMAT}, 0")
        A("    s_cbranch_scc1 L_vlast")
        for i in range(4):
            r = Q + 4 * i
            for p in range(4):
                A(f"    v_cvt_pk_bf16_f32 v{r+p}, v{Y+4*(2*p)+i}, v{Y+4*(2*p+1)+i}")
        A(f"    v_mov_b32 v{P0}, v{P1}")
        A(f"    v_mov_b32 v{P0+1}, v{P1+1}")
        A("    s_branch L_vskip")
        A("L_vlast:")
        for i in range(4):
            r = ACC + 4 * i
            for p in range(4):
                A(f"    v_cvt_pk_bf16_f32 v{r+p}, v{Y+4*(2*p)+i}, v{Y+4*(2*p+1)+i}")
            if not nostore:
                A(f"    buffer_store_dwordx4 v[{r}:{r+3}], v{VOFF_O}, s[{SO}:{SO+3}], s{SOOFF} offen offset:{256*i}{of}")
        for i in range(4):
            r = Q + 4 * i
            if not nostore:
                A(f"    buffer_store_dwordx4 v[{r}:{r+3}], v{VOFF_O}, s[{SO}:{SO+3}], 0 offen offset:{256*i}{of}")
    A("L_vskip:")
    next_slot()
    A(f"    s_add_u32 s{SOOFF}, s{SOOFF}, 0x2000")
    A(f"    s_add_u32 s{SMAT}, s{SMAT}, 1")
    A(f"    s_cmp_lt_u32 s{SMAT}, 2")
    A("    s_cbranch_scc1 L_vouter")
    if ts:
        stamp()
        A("    s_getreg_b32 s60, hwreg(HW_REG_XCC_ID)")
        A("    s_getreg_b32 s61, hwreg(HW_REG_HW_ID)")
        A(f"    v_writelane_b32 v{VTS}, s60, 62")
        A(f"    v_writelane_b32 v{VTS}, s61, 63")
        A(f"    s_mul_i32 s62, s2, {W*256}")
        A("    s_add_u32 s58, s58, s62")
        A("    s_addc_u32 s59, s59, 0")
        A("    v_lshlrev_b32 v16, 2, v0")
        A(f"    global_store_dword v16, v{VTS}, s[58:59]")
    A("L_end:")
    A("    s_endpgm")
    A('.section .rodata,"a"')
    A(".p2align 6")
    A(f".amdhsa_kernel {NAME}_kernel")
    A(f"  .amdhsa_next_free_vgpr {NV}")
    A("  .amdhsa_next_free_sgpr 64")
    A(f"  .amdhsa_accum_offset {min(256,(NV+3)//4*4)}")
    A("  .amdhsa_group_segment_fixed_size 0")
    A("  .amdhsa_kernarg_size 64")
    A("  .amdhsa_user_sgpr_count 2")
    A("  .amdhsa_user_sgpr_kernarg_segment_ptr 1")
    A("  .amdhsa_system_sgpr_workgroup_id_x 1")
    A(".end_amdhsa_kernel")
    return "\n".join(L) + "\n"


if __name__ == "__main__":
    ap = argparse.ArgumentParser()
    for k, d in dict(W=2, NB=2, win=12, ts=0, tsdiv=4, ldsx=98304, bar=0, warm=0, defer=1, nostore=0, skipl=1).items():
        ap.add_argument("--" + k, type=int, default=d)
    for k, d in dict(flags='nt', eflags='', qflags='nt', oflags='nt').items():
        ap.add_argument("--" + k, default=d)
    ap.add_argument("-o", default="-")
    a = vars(ap.parse_args())
    o = a.pop("o")
    s = gen(**a)
    if o == "-":
        sys.stdout.write(s)
    else:
        open(o, "w").write(s)
```

```python
import sys, argparse

NAME = "standalone__low_rank_proj_linformer__sampling"
HEADER = open('cdna_kernels/' + NAME + '.s.ref').read().split('; @launch')[0]


def gen(mid=10, rounds='112,176', wlen=16, mark=4, med=3, s0=6, gain=12, sgain=3, slowc=8, ts=0, tsdiv=4, ldsx=98304, dbg=0, boostc=-1, pfe=1):
    rl = [int(x) for x in rounds.split(',')] if rounds else []
    fb = 1 if rl else 0
    kctl = fb and rl[0] + wlen + 2 < 128
    W, NB = 2, 2
    L = []
    A = L.append
    BPM = 64
    SLOT = W * 8192
    QBASE = 2 * SLOT
    lds = max(QBASE + 16384, ldsx)
    A(HEADER + f"; @launch grid=(256,1,1) block=(128,1,1) lds={lds}")
    A('.amdgcn_target "amdgcn-amd-amdhsa--gfx950"')
    A(".text")
    A(f".globl {NAME}_kernel")
    A(".p2align 8")
    A(f".type {NAME}_kernel,@function")
    A(f"{NAME}_kernel:")
    VOFF_D, VOFF_E, VLDS_Q, VOFF_O, VTS, VLDS_W, VLDS_R = 1, 2, 3, 4, 5, 6, 7
    ACC = 8
    T = [40, 44]
    P0, P1 = 48, 50
    VPL = [52, 53]
    VPS, VPO = 54, 55
    X = 56
    Q = 72
    Y = 88
    BUF0 = 120
    def bufd(b, i): return BUF0 + 36 * b + 4 * i
    def bufe(b): return BUF0 + 36 * b + 32
    NV = BUF0 + 36 * NB
    SD, SP, SQ, SO, SG = 16, 20, 24, 28, 32
    SVB, SFB = 36, 38
    SSEL0, SSEL1, SIT, SDOFF, SEOFF, SWAVE, SMAT, SCNT, SNIT, SOOFF = 40, 41, 42, 43, 44, 45, 46, 47, 48, 49
    SCTL, SREP, STS = 56, 57, 63
    SWIN, SPO, SLIST, SH = 64, 65, 66, 68
    VAT = NV
    VPF = NV + 1
    NV += 2
    uid = [0]
    def lab(p):
        uid[0] += 1
        return f"L_{p}{uid[0]}"

    def stamp(inloop=False):
        if not ts:
            return
        lbl = lab("ts")
        if inloop and tsdiv > 1:
            A(f"    s_and_b32 s52, s{SIT}, {tsdiv-1}")
            A(f"    s_cmp_lg_u32 s52, {tsdiv-1}")
            A(f"    s_cbranch_scc1 {lbl}")
        A("    s_memrealtime s[50:51]")
        A(f"    s_mov_b32 m0, s{STS}")
        A("    s_waitcnt lgkmcnt(0)")
        A(f"    v_writelane_b32 v{VTS}, s50, m0")
        A(f"    s_add_u32 s{STS}, s{STS}, 1")
        A(f"{lbl}:")

    A("    s_cmp_ge_u32 s2, 256")
    A("    s_cbranch_scc1 L_end")
    if ts:
        A(f"    s_mov_b32 s{STS}, 0")
        A(f"    v_mov_b32 v{VTS}, 0")
        stamp()
    A("    s_load_dwordx8 s[4:11], s[0:1], 0")
    A("    s_load_dwordx4 s[12:15], s[0:1], 32")
    A(f"    s_load_dwordx2 s[{SG}:{SG+1}], s[0:1], 48")
    if ts:
        A("    s_load_dwordx2 s[58:59], s[0:1], 56")
    A("    v_lshrrev_b32 v8, 6, v0")
    A("    v_and_b32 v9, 15, v0")
    A("    v_bfe_u32 v10, v0, 4, 2")
    A(f"    v_readfirstlane_b32 s{SWAVE}, v8")
    A(f"    v_lshlrev_b32 v{VOFF_D}, 13, v8")
    A(f"    v_lshl_add_u32 v{VOFF_D}, v10, 11, v{VOFF_D}")
    A(f"    v_lshl_add_u32 v{VOFF_D}, v9, 4, v{VOFF_D}")
    A(f"    v_lshlrev_b32 v{VOFF_E}, 13, v9")
    A(f"    v_lshl_add_u32 v{VOFF_E}, v10, 4, v{VOFF_E}")
    A(f"    v_lshl_add_u32 v{VOFF_E}, v8, 6, v{VOFF_E}")
    A("    s_lshl_b32 s3, s2, 21")
    A("    s_lshl_b32 s55, s2, 14")
    A(f"    s_mov_b32 s{SD+2}, 0x200000")
    A(f"    s_mov_b32 s{SD+3}, 0x20000")
    A(f"    s_mov_b32 s{SP+2}, 0x20000")
    A(f"    s_mov_b32 s{SP+3}, 0x20000")
    A(f"    s_mov_b32 s{SDOFF}, 0")
    A(f"    s_mov_b32 s{SEOFF}, 0")
    A(f"    s_mov_b32 s{SCNT}, 0")
    A(f"    s_mov_b32 s{SG+2}, 0")
    A(f"    s_mov_b32 s{SG+3}, 0x20000")
    A(f"    s_mov_b32 s{SPO}, 0")
    A(f"    v_and_b32 v12, 63, v0")
    A(f"    v_lshlrev_b32 v{VPO}, 8, v12")
    A("    s_waitcnt lgkmcnt(0)")
    A(f"    s_add_u32 s{SD}, s6, s3")
    A(f"    s_addc_u32 s{SD+1}, s7, 0")
    A(f"    s_mov_b32 s{SP}, s10")
    A(f"    s_mov_b32 s{SP+1}, s11")

    PER = 10 if fb else 9
    stubs = []
    def loads(b, check, midwait):
        if fb:
            A(f"    buffer_load_dword v{VPL[b]}, v{VPO}, s[{SG}:{SG+3}], s{SPO} offen sc0 sc1")
        for i in range(8):
            r = bufd(b, i)
            off = f" offset:{i*256}" if i else ""
            if i == 4 and midwait:
                midwait()
            A(f"    buffer_load_dwordx4 v[{r}:{r+3}], v{VOFF_D}, s[{SD}:{SD+3}], s{SDOFF} offen{off} nt")
        A(f"    buffer_load_dwordx4 v[{bufe(b)}:{bufe(b)+3}], v{VOFF_E}, s[{SP}:{SP+3}], s{SEOFF} offen")
        A(f"    s_add_u32 s{SDOFF}, s{SDOFF}, {hex(W*0x2000)}")
        A(f"    s_add_u32 s{SEOFF}, s{SEOFF}, {W*64}")
        A(f"    s_and_b32 s{SDOFF}, s{SDOFF}, 0x1fffff")
        A(f"    s_and_b32 s{SEOFF}, s{SEOFF}, 0x1fff")
        A(f"    s_add_u32 s{SCNT}, s{SCNT}, 1")
        if check == 'K':
            A(f"    s_cmp_eq_u32 s{SCNT}, {2*BPM}")
            A(f"    s_cselect_b64 s[{SD}:{SD+1}], s[{SVB}:{SVB+1}], s[{SD}:{SD+1}]")
            A(f"    s_cselect_b64 s[{SP}:{SP+1}], s[{SFB}:{SFB+1}], s[{SP}:{SP+1}]")
        if fb and midwait:
            A(f"    s_sub_u32 s52, s{SCNT}, s{SWIN}")
            A(f"    s_cmp_lt_u32 s52, {wlen}")
            A(f"    s_cselect_b32 s{SG+2}, 128, 0")
            if b == 1:
                stub, back, chk = lab("rp"), lab("rb"), lab("rc")
                A(f"    s_cmp_eq_u32 s{SREP}, 0")
                A(f"    s_cbranch_scc1 {stub}")
                A(f"{back}:")
                dst, dbk = lab("dc"), lab("db")
                A(f"    s_cmp_eq_u32 s52, {wlen+2}")
                A(f"    s_cbranch_scc1 {dst}")
                A(f"{dbk}:")
                code = [f"{dst}:",
                    f"    v_readfirstlane_b32 s53, v{VPS}",
                    f"    v_mov_b32 v{VPS}, 0"]
                if dbg and ts:
                    code += [f"    s_add_u32 s54, s53, 100", f"    s_lshr_b32 m0, s{SPO}, 2", "    s_add_u32 m0, m0, 56", f"    v_writelane_b32 v{VTS}, s54, m0"]
                code += [
                    f"    s_sub_i32 s53, s53, {s0}",
                    f"    s_mul_i32 s54, s53, {gain}",
                    f"    s_mul_i32 s{SCTL}, s53, {sgain}",
                    f"    s_cmp_gt_i32 s53, 0",
                    f"    s_cselect_b32 s{SCTL}, s54, s{SCTL}",
                    f"    s_add_u32 s{SPO}, s{SPO}, 4",
                    f"    s_and_b32 s{SWIN}, s{SLIST}, 0xff",
                    f"    s_cselect_b32 s{SWIN}, s{SWIN}, 0x10000",
                    f"    s_lshr_b32 s{SLIST}, s{SLIST}, 8",
                    f"    s_branch {dbk}"]
                stubs.append(code)
                stubs.append([f"{stub}:",
                    f"    s_cmp_eq_u32 s52, {mark+4}",
                    f"    s_cbranch_scc1 {chk}",
                    f"    s_cmp_lg_u32 s52, {mark}",
                    f"    s_cbranch_scc1 {back}",
                    f"    v_mov_b32 v{VAT}, 1",
                    f"    s_mov_b64 exec, 1",
                    f"    buffer_atomic_add v{VAT}, off, s[{SH}:{SH+3}], s{SPO} offset:128 sc0 sc1",
                    f"    s_mov_b64 exec, -1",
                    f"    s_branch {back}",
                    f"{chk}:",
                    f"    v_readfirstlane_b32 s53, v{VAT}",
                    f"    s_nop 0",
                    f"    s_cmp_lg_u32 s53, {med}",
                    f"    s_cbranch_scc1 {back}",
                    f"    v_mov_b32 v{VAT}, 1",
                    f"    s_mov_b64 exec, 1",
                    f"    buffer_store_dword v{VAT}, off, s[{SH}:{SH+3}], s{SPO} sc0 sc1",
                    f"    s_mov_b64 exec, -1",
                    f"    s_branch {back}"])

    def perms(b, e):
        w, h = e >> 1, e & 1
        t = T[e & 1]
        sel = SSEL1 if h else SSEL0
        for q in range(4):
            lo_ = bufd(b, 2 * q) + w
            hi_ = bufd(b, 2 * q + 1) + w
            A(f"    v_perm_b32 v{t+q}, v{hi_}, v{lo_}, s{sel}")

    def mfma(b, e, isK):
        t = T[e & 1]
        a = ACC + 4 * e
        eb = bufe(b)
        if isK:
            A(f"    v_mfma_f32_16x16x32_bf16 v[{a}:{a+3}], v[{t}:{t+3}], v[{eb}:{eb+3}], v[{a}:{a+3}]")
        else:
            A(f"    v_mfma_f32_16x16x32_bf16 v[{a}:{a+3}], v[{eb}:{eb+3}], v[{t}:{t+3}], v[{a}:{a+3}]")

    def compute(b, isK):
        perms(b, 0)
        for e in range(8):
            if e < 7:
                perms(b, e + 1)
            else:
                A("    s_nop 1")
            mfma(b, e, isK)

    for b in range(NB):
        loads(b, None, None)
    A(f"    s_add_u32 s{SQ}, s4, s55")
    A(f"    s_addc_u32 s{SQ+1}, s5, 0")
    A(f"    s_mov_b32 s{SQ+2}, 0x4000")
    A(f"    s_mov_b32 s{SQ+3}, 0x20000")
    A(f"    s_lshl_b32 s53, s{SWAVE}, 13")
    A(f"    v_and_b32 v12, 63, v0")
    A(f"    v_lshlrev_b32 v{VLDS_R}, 4, v12")
    for j0 in range(0, 8, 4):
        A(f"    s_add_u32 s54, s53, {QBASE}")
        A("    s_mov_b32 m0, s54")
        A("    s_nop 0")
        for j in range(4):
            off = f" offset:{j*1024}" if j else ""
            A(f"    buffer_load_dwordx4 v{VLDS_R}, s[{SQ}:{SQ+3}], s53 offen{off} nt lds")
        A(f"    s_add_u32 s53, s53, 0x1000")
    if pfe:
        A(f"    s_lshr_b32 s67, s2, 3")
        A(f"    s_lshl_b32 s67, s67, 1")
        A(f"    s_add_u32 s67, s67, s{SWAVE}")
        A(f"    s_lshl_b32 s67, s67, 11")
        A(f"    buffer_load_dwordx4 v[{Y}:{Y+3}], v{VLDS_R}, s[{SP}:{SP+3}], s67 offen")
        A(f"    buffer_load_dwordx4 v[{Y+4}:{Y+7}], v{VLDS_R}, s[{SP}:{SP+3}], s67 offen offset:1024")
        A(f"    v_mov_b32 v{VPF}, v{VLDS_R}")
    A(f"    s_add_u32 s{SVB}, s8, s3")
    A(f"    s_addc_u32 s{SVB+1}, s9, 0")
    A(f"    s_mov_b32 s{SFB}, s12")
    A(f"    s_mov_b32 s{SFB+1}, s13")
    A(f"    s_add_u32 s{SO}, s14, s55")
    A(f"    s_addc_u32 s{SO+1}, s15, 0")
    A(f"    s_mov_b32 s{SO+2}, 0x4000")
    A(f"    s_mov_b32 s{SO+3}, 0x20000")
    A(f"    s_mov_b32 s{SH}, s{SG}")
    A(f"    s_mov_b32 s{SH+1}, s{SG+1}")
    A(f"    s_mov_b32 s{SH+2}, 256")
    A(f"    s_mov_b32 s{SH+3}, 0x20000")
    if fb:
        assert len(rl) <= 5
        A(f"    s_mov_b32 s{SWIN}, {rl[0]}")
        A(f"    s_mov_b32 s{SLIST}, {hex(sum(v << (8*i) for i, v in enumerate(rl[1:])))}")
    A(f"    v_mov_b32 v{VPS}, 0")
    A(f"    s_mov_b32 s{SSEL0}, 0x05040100")
    A(f"    s_mov_b32 s{SSEL1}, 0x07060302")
    A("    s_mov_b32 s60, 0x3db504f3")
    A("    s_mov_b32 s61, 0xffff0000")
    A("    s_mov_b32 s62, 0x3fb8aa3b")
    A(f"    v_lshl_add_u32 v{VLDS_W}, v8, 13, v{VLDS_R}")
    A(f"    v_xor_b32 v{VLDS_R}, 0x2000, v{VLDS_W}")
    A(f"    v_lshlrev_b32 v{VLDS_Q}, 12, v8")
    A(f"    v_lshl_add_u32 v{VLDS_Q}, v9, 8, v{VLDS_Q}")
    A(f"    v_lshl_add_u32 v{VLDS_Q}, v10, 6, v{VLDS_Q}")
    A(f"    v_add_u32 v{VLDS_Q}, {QBASE}, v{VLDS_Q}")
    A(f"    v_lshlrev_b32 v{VOFF_O}, 12, v8")
    A(f"    v_lshl_add_u32 v{VOFF_O}, v10, 10, v{VOFF_O}")
    A(f"    v_lshl_add_u32 v{VOFF_O}, v9, 4, v{VOFF_O}")
    A(f"    s_mov_b32 s{SOOFF}, 0")
    A(f"    s_mov_b32 s{SCTL}, 0")
    A(f"    s_lshr_b32 s{SREP}, s2, 3")
    A(f"    s_or_b32 s{SREP}, s{SREP}, s{SWAVE}")

    def zero_acc():
        for i in range(32):
            A(f"    v_mov_b32 v{ACC+i}, 0")

    def mid_plain(c):
        def f():
            A(f"    s_waitcnt vmcnt({c})")
        return f

    def mid_ctl():
        stub, back = lab("cs"), lab("cb")
        A(f"    s_cmp_lg_u32 s{SCTL}, 0")
        A(f"    s_cbranch_scc1 {stub}")
        A(f"    s_waitcnt vmcnt({mid+1})")
        A(f"{back}:")
        code = [f"{stub}:"]
        if sgain:
            sl = lab("sl")
            code += [f"    s_cmp_lt_i32 s{SCTL}, 0", f"    s_cbranch_scc1 {sl}"]
        code += [f"    s_sub_u32 s{SCTL}, s{SCTL}, 1"]
        if boostc >= 0:
            code += [f"    s_waitcnt vmcnt({boostc})"]
        code += [f"    s_branch {back}"]
        if sgain:
            code += [f"{sl}:", f"    s_add_u32 s{SCTL}, s{SCTL}, 1", f"    s_waitcnt vmcnt({slowc+1})", f"    s_branch {back}"]
        stubs.append(code)

    def flush_stubs():
        if stubs:
            after = lab("after")
            A(f"    s_branch {after}")
            for c in stubs:
                for l in c:
                    A(l)
            A(f"{after}:")
            stubs.clear()

    def loop(nm, isK):
        A(f"    s_mov_b32 s{SIT}, 0")
        A(f"L_{nm}:")
        for b in range(NB):
            A(f"    s_waitcnt vmcnt({PER})")
            if fb:
                A(f"    v_add_u32 v{VPS}, v{VPS}, v{VPL[b]}")
            compute(b, isK)
            mw = mid_plain(mid + (1 if fb else 0)) if ((isK and not kctl) or not fb) else mid_ctl
            if isK:
                loads(b, 'K', mw)
            else:
                stub, back = lab("stub"), lab("back")
                A(f"    s_cmp_eq_u32 s{SCNT}, {4*BPM}")
                A(f"    s_cbranch_scc1 {stub if b == 0 else back}")
                loads(b, None, mw)
                A(f"{back}:")
                if b == 0:
                    stubs.append([f"{stub}:", "    s_waitcnt vmcnt(0)", f"    s_branch {back}"])
        stamp(True)
        A(f"    s_add_u32 s{SIT}, s{SIT}, 1")
        A(f"    s_cmp_lt_u32 s{SIT}, s{SNIT}")
        A(f"    s_cbranch_scc1 L_{nm}")
        flush_stubs()

    def exchange():
        A("    s_nop 7")
        for e in range(8):
            a = ACC + 4 * e
            A(f"    ds_write_b128 v{VLDS_W}, v[{a}:{a+3}] offset:{e*1024}")
        A("    s_waitcnt lgkmcnt(0)")
        A("    s_barrier")
        for e in range(8):
            A(f"    ds_read_b128 v[{Y+4*e}:{Y+4*e+3}], v{VLDS_R} offset:{e*1024}")
        for e in range(8):
            a, t = ACC + 4 * e, Y + 4 * e
            A(f"    s_waitcnt lgkmcnt({7-e})")
            A(f"    v_pk_add_f32 v[{a}:{a+1}], v[{a}:{a+1}], v[{t}:{t+1}]")
            A(f"    v_pk_add_f32 v[{a+2}:{a+3}], v[{a+2}:{a+3}], v[{t+2}:{t+3}]")

    def next_slot():
        A(f"    v_xor_b32 v{VLDS_W}, {SLOT}, v{VLDS_W}")
        A(f"    v_xor_b32 v{VLDS_R}, {SLOT}, v{VLDS_R}")

    NI = BPM // NB
    A(f"    s_mov_b32 s{SMAT}, 0")
    A(f"    s_mov_b32 s{SNIT}, {NI}")
    A("L_kouter:")
    zero_acc()
    loop("kloop", True)
    exchange()
    for i in range(4):
        A(f"    ds_read_b128 v[{Q+4*i}:{Q+4*i+3}], v{VLDS_Q} offset:{16*i}")
    for i in range(4):
        for p in range(4):
            A(f"    v_cvt_pk_bf16_f32 v{X+4*i+p}, v{ACC+4*(2*p)+i}, v{ACC+4*(2*p+1)+i}")
    S, U = T[0], T[1]
    A(f"    s_waitcnt lgkmcnt(0)")
    for i in range(4):
        c = "0" if i == 0 else f"v[{S}:{S+3}]"
        A(f"    v_mfma_f32_16x16x32_bf16 v[{S}:{S+3}], v[{X+4*i}:{X+4*i+3}], v[{Q+4*i}:{Q+4*i+3}], {c}")
    A("    s_nop 7")
    A(f"    v_cvt_pk_bf16_f32 v{U}, v{S}, v{S+1}")
    A(f"    v_cvt_pk_bf16_f32 v{U+1}, v{S+2}, v{S+3}")
    A(f"    v_lshlrev_b32 v{S}, 16, v{U}")
    A(f"    v_and_b32 v{S+1}, s61, v{U}")
    A(f"    v_lshlrev_b32 v{S+2}, 16, v{U+1}")
    A(f"    v_and_b32 v{S+3}, s61, v{U+1}")
    for i in range(4):
        A(f"    v_mul_f32 v{S+i}, s60, v{S+i}")
    A(f"    v_cvt_pk_bf16_f32 v{U}, v{S}, v{S+1}")
    A(f"    v_cvt_pk_bf16_f32 v{U+1}, v{S+2}, v{S+3}")
    A(f"    v_lshlrev_b32 v{S}, 16, v{U}")
    A(f"    v_and_b32 v{S+1}, s61, v{U}")
    A(f"    v_lshlrev_b32 v{S+2}, 16, v{U+1}")
    A(f"    v_and_b32 v{S+3}, s61, v{U+1}")
    M, M2 = U, U + 1
    A(f"    v_max_f32 v{M}, v{S}, v{S+1}")
    A(f"    v_max3_f32 v{M}, v{M}, v{S+2}, v{S+3}")
    def xreduce(op):
        A(f"    v_mov_b32 v{M2}, v{M}")
        A("    s_nop 1")
        A(f"    v_permlane16_swap_b32 v{M}, v{M2}")
        A(f"    {op} v{M}, v{M}, v{M2}")
        A(f"    v_mov_b32 v{M2}, v{M}")
        A("    s_nop 1")
        A(f"    v_permlane32_swap_b32 v{M}, v{M2}")
        A(f"    {op} v{M}, v{M}, v{M2}")
    xreduce("v_max_f32")
    for i in range(4):
        A(f"    v_sub_f32 v{S+i}, v{S+i}, v{M}")
    for i in range(4):
        A(f"    v_mul_f32 v{S+i}, s62, v{S+i}")
    for i in range(4):
        A(f"    v_exp_f32 v{S+i}, v{S+i}")
    A("    s_nop 0")
    A(f"    v_add_f32 v{M}, v{S}, v{S+1}")
    A(f"    v_add_f32 v{M2}, v{S+2}, v{S+3}")
    A(f"    v_add_f32 v{M}, v{M}, v{M2}")
    xreduce("v_add_f32")
    A(f"    v_rcp_f32 v{M}, v{M}")
    A("    s_nop 0")
    for i in range(4):
        A(f"    v_mul_f32 v{S+i}, v{S+i}, v{M}")
    A(f"    v_mov_b32 v{P0}, v{P1}")
    A(f"    v_mov_b32 v{P0+1}, v{P1+1}")
    A(f"    v_cvt_pk_bf16_f32 v{P1}, v{S}, v{S+1}")
    A(f"    v_cvt_pk_bf16_f32 v{P1+1}, v{S+2}, v{S+3}")
    if pfe:
        A(f"    s_cmp_lg_u32 s{SMAT}, {0 if pfe == 1 else 1}")
        A("    s_cbranch_scc1 L_nopf")
        A(f"    s_mov_b32 s{SQ}, s{SFB}")
        A(f"    s_mov_b32 s{SQ+1}, s{SFB+1}")
        A(f"    s_mov_b32 s{SQ+2}, 0x20000")
        A(f"    buffer_load_dwordx4 v[{Y}:{Y+3}], v{VPF}, s[{SQ}:{SQ+3}], s67 offen")
        A(f"    buffer_load_dwordx4 v[{Y+4}:{Y+7}], v{VPF}, s[{SQ}:{SQ+3}], s67 offen offset:1024")
        A("L_nopf:")
    next_slot()
    A(f"    v_add_u32 v{VLDS_Q}, 0x2000, v{VLDS_Q}")
    A(f"    s_add_u32 s{SMAT}, s{SMAT}, 1")
    A(f"    s_cmp_lt_u32 s{SMAT}, 2")
    A("    s_cbranch_scc1 L_kouter")
    A(f"    s_mov_b32 s{SMAT}, 0")
    A("L_vouter:")
    zero_acc()
    loop("vloop", False)
    exchange()
    for e in range(8):
        a = ACC + 4 * e
        A(f"    v_cvt_pk_bf16_f32 v{X+2*e}, v{a}, v{a+1}")
        A(f"    v_cvt_pk_bf16_f32 v{X+2*e+1}, v{a+2}, v{a+3}")
    A("    s_nop 1")
    for e in range(8):
        o = Y + 4 * e
        A(f"    v_mfma_f32_16x16x16_bf16 v[{o}:{o+3}], v[{P0}:{P0+1}], v[{X+2*e}:{X+2*e+1}], 0")
    A("    s_nop 7")
    A(f"    s_cmp_lg_u32 s{SMAT}, 0")
    A("    s_cbranch_scc1 L_vlast")
    for i in range(4):
        r = Q + 4 * i
        for p in range(4):
            A(f"    v_cvt_pk_bf16_f32 v{r+p}, v{Y+4*(2*p)+i}, v{Y+4*(2*p+1)+i}")
    A(f"    v_mov_b32 v{P0}, v{P1}")
    A(f"    v_mov_b32 v{P0+1}, v{P1+1}")
    next_slot()
    A(f"    s_mov_b32 s{SMAT}, 1")
    A("    s_branch L_vouter")
    A("L_vlast:")
    A(f"    s_movk_i32 s{SOOFF}, 0x2000")
    for i in range(4):
        r = Q + 4 * i
        A(f"    buffer_store_dwordx4 v[{r}:{r+3}], v{VOFF_O}, s[{SO}:{SO+3}], 0 offen offset:{256*i} nt")
    for i in range(4):
        r = ACC + 4 * i
        for p in range(4):
            A(f"    v_cvt_pk_bf16_f32 v{r+p}, v{Y+4*(2*p)+i}, v{Y+4*(2*p+1)+i}")
        A(f"    buffer_store_dwordx4 v[{r}:{r+3}], v{VOFF_O}, s[{SO}:{SO+3}], s{SOOFF} offen offset:{256*i} nt")
    if ts:
        stamp()
        A("    s_getreg_b32 s60, hwreg(HW_REG_XCC_ID)")
        A("    s_getreg_b32 s61, hwreg(HW_REG_HW_ID)")
        A(f"    v_writelane_b32 v{VTS}, s60, 62")
        A(f"    v_writelane_b32 v{VTS}, s61, 63")
        A(f"    s_mul_i32 s62, s2, {W*256}")
        A("    s_add_u32 s58, s58, s62")
        A("    s_addc_u32 s59, s59, 0")
        A("    v_lshlrev_b32 v120, 2, v0")
        A(f"    global_store_dword v120, v{VTS}, s[58:59]")
    A("L_end:")
    A("    s_endpgm")
    A('.section .rodata,"a"')
    A(".p2align 6")
    A(f".amdhsa_kernel {NAME}_kernel")
    A(f"  .amdhsa_next_free_vgpr {NV}")
    A("  .amdhsa_next_free_sgpr 72")
    A(f"  .amdhsa_accum_offset {min(256,(NV+3)//4*4)}")
    A("  .amdhsa_group_segment_fixed_size 0")
    A("  .amdhsa_kernarg_size 64")
    A("  .amdhsa_user_sgpr_count 2")
    A("  .amdhsa_user_sgpr_kernarg_segment_ptr 1")
    A("  .amdhsa_system_sgpr_workgroup_id_x 1")
    A(".end_amdhsa_kernel")
    return "\n".join(L) + "\n"


if __name__ == "__main__":
    ap = argparse.ArgumentParser()
    for k, d in dict(mid=10, wlen=16, mark=4, med=3, s0=6, gain=12, sgain=3, slowc=8, ts=0, tsdiv=4, ldsx=98304, dbg=0, boostc=-1, pfe=1).items():
        ap.add_argument("--" + k, type=int, default=d)
    ap.add_argument('--rounds', default='112,176')
    ap.add_argument("-o", default="-")
    a = vars(ap.parse_args())
    o = a.pop("o")
    s = gen(**a)
    (sys.stdout if o == "-" else open(o, "w")).write(s)
```

```python
import sys, argparse

NAME = "standalone__low_rank_proj_linformer__sampling"
HEADER = open('cdna_kernels/' + NAME + '.s.ref').read().split('; @launch')[0]


def gen(mid=10, rounds='112,176', wlen=16, mark=4, med=3, s0=6, gain=12, sgain=3, slowc=8, ts=0, tsdiv=4, ldsx=98304, dbg=0, boostc=-1, pfe=1, am=-12, phalf=0, plast=1, est=1):
    rl = [int(x) for x in rounds.split(',')] if rounds else []
    fb = 1 if rl else 0
    kctl = fb and rl[0] + wlen + 2 < 128
    W, NB = 2, 2
    L = []
    A = L.append
    BPM = 64
    SLOT = W * 8192
    QBASE = 2 * SLOT
    lds = max(QBASE + 16384, ldsx)
    A(HEADER + f"; @launch grid=(256,1,1) block=(128,1,1) lds={lds}")
    A('.amdgcn_target "amdgcn-amd-amdhsa--gfx950"')
    A(".text")
    A(f".globl {NAME}_kernel")
    A(".p2align 8")
    A(f".type {NAME}_kernel,@function")
    A(f"{NAME}_kernel:")
    VOFF_D, VOFF_E, VLDS_Q, VOFF_O, VTS, VLDS_W, VLDS_R = 1, 2, 3, 4, 5, 6, 7
    ACC = 8
    T = [40, 44]
    P0, P1 = 48, 50
    VPL = [52, 53]
    VPS, VPO = 54, 55
    X = 56
    Q = 72
    Y = 88
    BUF0 = 120
    def bufd(b, i): return BUF0 + 36 * b + 4 * i
    def bufe(b): return BUF0 + 36 * b + 32
    NV = BUF0 + 36 * NB
    SD, SP, SQ, SO, SG = 16, 20, 24, 28, 32
    SVB, SFB = 36, 38
    SSEL0, SSEL1, SIT, SDOFF, SEOFF, SWAVE, SMAT, SCNT, SNIT, SOOFF = 40, 41, 42, 43, 44, 45, 46, 47, 48, 49
    SCTL, SREP, STS = 56, 57, 63
    SWIN, SPO, SLIST, SH = 64, 65, 66, 68
    VAT = NV
    VPF = NV + 1
    NV += 2
    uid = [0]
    def lab(p):
        uid[0] += 1
        return f"L_{p}{uid[0]}"

    def stamp(inloop=False):
        if not ts:
            return
        lbl = lab("ts")
        if inloop and tsdiv > 1:
            A(f"    s_and_b32 s52, s{SIT}, {tsdiv-1}")
            A(f"    s_cmp_lg_u32 s52, {tsdiv-1}")
            A(f"    s_cbranch_scc1 {lbl}")
        A("    s_memrealtime s[50:51]")
        A(f"    s_mov_b32 m0, s{STS}")
        A("    s_waitcnt lgkmcnt(0)")
        A(f"    v_writelane_b32 v{VTS}, s50, m0")
        A(f"    s_add_u32 s{STS}, s{STS}, 1")
        A(f"{lbl}:")

    A("    s_cmp_ge_u32 s2, 256")
    A("    s_cbranch_scc1 L_end")
    if ts:
        A(f"    s_mov_b32 s{STS}, 0")
        A(f"    v_mov_b32 v{VTS}, 0")
        stamp()
    A("    s_load_dwordx8 s[4:11], s[0:1], 0")
    A("    s_load_dwordx4 s[12:15], s[0:1], 32")
    A(f"    s_load_dwordx2 s[{SG}:{SG+1}], s[0:1], 48")
    if ts:
        A("    s_load_dwordx2 s[58:59], s[0:1], 56")
    A("    v_lshrrev_b32 v8, 6, v0")
    A("    v_and_b32 v9, 15, v0")
    A("    v_bfe_u32 v10, v0, 4, 2")
    A(f"    v_readfirstlane_b32 s{SWAVE}, v8")
    A(f"    v_lshlrev_b32 v{VOFF_D}, 13, v8")
    A(f"    v_lshl_add_u32 v{VOFF_D}, v10, 11, v{VOFF_D}")
    A(f"    v_lshl_add_u32 v{VOFF_D}, v9, 4, v{VOFF_D}")
    A(f"    v_lshlrev_b32 v{VOFF_E}, 13, v9")
    A(f"    v_lshl_add_u32 v{VOFF_E}, v10, 4, v{VOFF_E}")
    A(f"    v_lshl_add_u32 v{VOFF_E}, v8, 6, v{VOFF_E}")
    A("    s_lshl_b32 s3, s2, 21")
    A("    s_lshl_b32 s55, s2, 14")
    A(f"    s_mov_b32 s{SD+2}, 0x200000")
    A(f"    s_mov_b32 s{SD+3}, 0x20000")
    A(f"    s_mov_b32 s{SP+2}, 0x20000")
    A(f"    s_mov_b32 s{SP+3}, 0x20000")
    A(f"    s_mov_b32 s{SDOFF}, 0")
    A(f"    s_mov_b32 s{SEOFF}, 0")
    A(f"    s_mov_b32 s{SCNT}, 0")
    A(f"    s_mov_b32 s{SG+2}, 0")
    A(f"    s_mov_b32 s{SG+3}, 0x20000")
    A(f"    s_mov_b32 s{SPO}, 0")
    A(f"    v_and_b32 v12, 63, v0")
    A(f"    v_lshlrev_b32 v{VPO}, 8, v12")
    A("    s_waitcnt lgkmcnt(0)")
    A(f"    s_add_u32 s{SD}, s6, s3")
    A(f"    s_addc_u32 s{SD+1}, s7, 0")
    A(f"    s_mov_b32 s{SP}, s10")
    A(f"    s_mov_b32 s{SP+1}, s11")

    PER = 10 if fb else 9
    stubs = []
    def loads(b, check, midwait):
        if fb and not plast:
            A(f"    buffer_load_dword v{VPL[b]}, v{VPO}, s[{SG}:{SG+3}], s{SPO} offen sc0 sc1")
        for i in range(8):
            r = bufd(b, i)
            off = f" offset:{i*256}" if i else ""
            if i == 4 and midwait:
                midwait()
            A(f"    buffer_load_dwordx4 v[{r}:{r+3}], v{VOFF_D}, s[{SD}:{SD+3}], s{SDOFF} offen{off} nt")
        A(f"    buffer_load_dwordx4 v[{bufe(b)}:{bufe(b)+3}], v{VOFF_E}, s[{SP}:{SP+3}], s{SEOFF} offen")
        if fb and plast:
            if midwait:
                A(f"    v_add_u32 v{VPS}, v{VPS}, v{VPL[b]}")
            A(f"    buffer_load_dword v{VPL[b]}, v{VPO}, s[{SG}:{SG+3}], s{SPO} offen sc0 sc1")
        A(f"    s_add_u32 s{SDOFF}, s{SDOFF}, {hex(W*0x2000)}")
        A(f"    s_add_u32 s{SEOFF}, s{SEOFF}, {W*64}")
        A(f"    s_and_b32 s{SDOFF}, s{SDOFF}, 0x1fffff")
        A(f"    s_and_b32 s{SEOFF}, s{SEOFF}, 0x1fff")
        A(f"    s_add_u32 s{SCNT}, s{SCNT}, 1")
        if check == 'K':
            A(f"    s_cmp_eq_u32 s{SCNT}, {2*BPM}")
            A(f"    s_cselect_b64 s[{SD}:{SD+1}], s[{SVB}:{SVB+1}], s[{SD}:{SD+1}]")
            A(f"    s_cselect_b64 s[{SP}:{SP+1}], s[{SFB}:{SFB+1}], s[{SP}:{SP+1}]")
        if fb and midwait:
            A(f"    s_sub_u32 s52, s{SCNT}, s{SWIN}")
            A(f"    s_cmp_lt_u32 s52, {wlen}")
            if phalf and b == 0:
                A(f"    s_mov_b32 s{SG+2}, 0")
            else:
                A(f"    s_cselect_b32 s{SG+2}, 128, 0")
            if b == 1:
                stub, back, chk = lab("rp"), lab("rb"), lab("rc")
                A(f"    s_cmp_eq_u32 s{SREP}, 0")
                A(f"    s_cbranch_scc1 {stub}")
                A(f"{back}:")
                dst, dbk = lab("dc"), lab("db")
                A(f"    s_cmp_eq_u32 s52, {wlen+2}")
                A(f"    s_cbranch_scc1 {dst}")
                A(f"{dbk}:")
                code = [f"{dst}:",
                    f"    v_readfirstlane_b32 s53, v{VPS}",
                    f"    v_mov_b32 v{VPS}, 0"]
                if dbg and ts:
                    code += [f"    s_add_u32 s54, s53, 100", f"    s_lshr_b32 m0, s{SPO}, 2", "    s_add_u32 m0, m0, 56", f"    v_writelane_b32 v{VTS}, s54, m0"]
                code += [
                    f"    s_sub_i32 s53, s53, {s0}",
                    f"    s_mul_i32 s54, s53, {gain}",
                    f"    s_mul_i32 s{SCTL}, s53, {sgain}",
                    f"    s_cmp_gt_i32 s53, 0",
                    f"    s_cselect_b32 s{SCTL}, s54, s{SCTL}",
                    f"    s_add_u32 s{SPO}, s{SPO}, 4",
                    f"    s_and_b32 s{SWIN}, s{SLIST}, 0xff",
                    f"    s_cselect_b32 s{SWIN}, s{SWIN}, 0x10000",
                    f"    s_lshr_b32 s{SLIST}, s{SLIST}, 8",
                    f"    s_branch {dbk}"]
                stubs.append(code)
                stubs.append([f"{stub}:",
                    f"    s_cmp_eq_u32 s52, {mark+4}",
                    f"    s_cbranch_scc1 {chk}",
                    f"    s_cmp_lg_i32 s52, {am}",
                    f"    s_cbranch_scc1 {back}",
                    f"    v_mov_b32 v{VAT}, 1",
                    f"    s_mov_b64 exec, 1",
                    f"    buffer_atomic_add v{VAT}, off, s[{SH}:{SH+3}], s{SPO} offset:128 sc0 sc1",
                    f"    s_mov_b64 exec, -1",
                    f"    s_branch {back}",
                    f"{chk}:",
                    f"    v_readfirstlane_b32 s53, v{VAT}",
                    f"    s_nop 0",
                    f"    s_cmp_lg_u32 s53, {med}",
                    f"    s_cbranch_scc1 {back}",
                    f"    v_mov_b32 v{VAT}, 1",
                    f"    s_mov_b64 exec, 1",
                    f"    buffer_store_dword v{VAT}, off, s[{SH}:{SH+3}], s{SPO} sc0 sc1",
                    f"    s_mov_b64 exec, -1",
                    f"    s_branch {back}"])

    def perms(b, e):
        w, h = e >> 1, e & 1
        t = T[e & 1]
        sel = SSEL1 if h else SSEL0
        for q in range(4):
            lo_ = bufd(b, 2 * q) + w
            hi_ = bufd(b, 2 * q + 1) + w
            A(f"    v_perm_b32 v{t+q}, v{hi_}, v{lo_}, s{sel}")

    def mfma(b, e, isK):
        t = T[e & 1]
        a = ACC + 4 * e
        eb = bufe(b)
        if isK:
            A(f"    v_mfma_f32_16x16x32_bf16 v[{a}:{a+3}], v[{t}:{t+3}], v[{eb}:{eb+3}], v[{a}:{a+3}]")
        else:
            A(f"    v_mfma_f32_16x16x32_bf16 v[{a}:{a+3}], v[{eb}:{eb+3}], v[{t}:{t+3}], v[{a}:{a+3}]")

    def compute(b, isK):
        perms(b, 0)
        for e in range(8):
            if e < 7:
                perms(b, e + 1)
            else:
                A("    s_nop 1")
            mfma(b, e, isK)

    for b in range(NB):
        loads(b, None, None)
    A(f"    s_add_u32 s{SQ}, s4, s55")
    A(f"    s_addc_u32 s{SQ+1}, s5, 0")
    A(f"    s_mov_b32 s{SQ+2}, 0x4000")
    A(f"    s_mov_b32 s{SQ+3}, 0x20000")
    A(f"    s_lshl_b32 s53, s{SWAVE}, 13")
    A(f"    v_and_b32 v12, 63, v0")
    A(f"    v_lshlrev_b32 v{VLDS_R}, 4, v12")
    for j0 in range(0, 8, 4):
        A(f"    s_add_u32 s54, s53, {QBASE}")
        A("    s_mov_b32 m0, s54")
        A("    s_nop 0")
        for j in range(4):
            off = f" offset:{j*1024}" if j else ""
            A(f"    buffer_load_dwordx4 v{VLDS_R}, s[{SQ}:{SQ+3}], s53 offen{off} nt lds")
        A(f"    s_add_u32 s53, s53, 0x1000")
    if pfe:
        A(f"    s_lshr_b32 s67, s2, 3")
        A(f"    s_lshl_b32 s67, s67, 1")
        A(f"    s_add_u32 s67, s67, s{SWAVE}")
        A(f"    s_lshl_b32 s67, s67, 11")
        A(f"    buffer_load_dwordx4 v[{Y}:{Y+3}], v{VLDS_R}, s[{SP}:{SP+3}], s67 offen")
        A(f"    buffer_load_dwordx4 v[{Y+4}:{Y+7}], v{VLDS_R}, s[{SP}:{SP+3}], s67 offen offset:1024")
        A(f"    v_mov_b32 v{VPF}, v{VLDS_R}")
    A(f"    s_add_u32 s{SVB}, s8, s3")
    A(f"    s_addc_u32 s{SVB+1}, s9, 0")
    A(f"    s_mov_b32 s{SFB}, s12")
    A(f"    s_mov_b32 s{SFB+1}, s13")
    A(f"    s_add_u32 s{SO}, s14, s55")
    A(f"    s_addc_u32 s{SO+1}, s15, 0")
    A(f"    s_mov_b32 s{SO+2}, 0x4000")
    A(f"    s_mov_b32 s{SO+3}, 0x20000")
    A(f"    s_mov_b32 s{SH}, s{SG}")
    A(f"    s_mov_b32 s{SH+1}, s{SG+1}")
    A(f"    s_mov_b32 s{SH+2}, 256")
    A(f"    s_mov_b32 s{SH+3}, 0x20000")
    if fb:
        assert len(rl) <= 5
        A(f"    s_mov_b32 s{SWIN}, {rl[0]}")
        A(f"    s_mov_b32 s{SLIST}, {hex(sum(v << (8*i) for i, v in enumerate(rl[1:])))}")
    A(f"    v_mov_b32 v{VPS}, 0")
    A(f"    s_mov_b32 s{SSEL0}, 0x05040100")
    A(f"    s_mov_b32 s{SSEL1}, 0x07060302")
    A("    s_mov_b32 s60, 0x3db504f3")
    A("    s_mov_b32 s61, 0xffff0000")
    A("    s_mov_b32 s62, 0x3fb8aa3b")
    A(f"    v_lshl_add_u32 v{VLDS_W}, v8, 13, v{VLDS_R}")
    A(f"    v_xor_b32 v{VLDS_R}, 0x2000, v{VLDS_W}")
    A(f"    v_lshlrev_b32 v{VLDS_Q}, 12, v8")
    A(f"    v_lshl_add_u32 v{VLDS_Q}, v9, 8, v{VLDS_Q}")
    A(f"    v_lshl_add_u32 v{VLDS_Q}, v10, 6, v{VLDS_Q}")
    A(f"    v_add_u32 v{VLDS_Q}, {QBASE}, v{VLDS_Q}")
    A(f"    v_lshlrev_b32 v{VOFF_O}, 12, v8")
    A(f"    v_lshl_add_u32 v{VOFF_O}, v10, 10, v{VOFF_O}")
    A(f"    v_lshl_add_u32 v{VOFF_O}, v9, 4, v{VOFF_O}")
    A(f"    s_mov_b32 s{SOOFF}, 0")
    A(f"    s_mov_b32 s{SCTL}, 0")
    A(f"    s_lshr_b32 s{SREP}, s2, 3")
    A(f"    s_or_b32 s{SREP}, s{SREP}, s{SWAVE}")

    def zero_acc():
        for i in range(32):
            A(f"    v_mov_b32 v{ACC+i}, 0")

    def mid_plain(c):
        def f():
            A(f"    s_waitcnt vmcnt({c})")
        return f

    def mid_ctl():
        stub, back = lab("cs"), lab("cb")
        A(f"    s_cmp_lg_u32 s{SCTL}, 0")
        A(f"    s_cbranch_scc1 {stub}")
        A(f"    s_waitcnt vmcnt({mid+1})")
        A(f"{back}:")
        code = [f"{stub}:"]
        if sgain:
            sl = lab("sl")
            code += [f"    s_cmp_lt_i32 s{SCTL}, 0", f"    s_cbranch_scc1 {sl}"]
        code += [f"    s_sub_u32 s{SCTL}, s{SCTL}, 1"]
        if boostc >= 0:
            code += [f"    s_waitcnt vmcnt({boostc})"]
        code += [f"    s_branch {back}"]
        if sgain:
            code += [f"{sl}:", f"    s_add_u32 s{SCTL}, s{SCTL}, 1", f"    s_waitcnt vmcnt({slowc+1})", f"    s_branch {back}"]
        stubs.append(code)

    def flush_stubs():
        if stubs:
            after = lab("after")
            A(f"    s_branch {after}")
            for c in stubs:
                for l in c:
                    A(l)
            A(f"{after}:")
            stubs.clear()

    def loop(nm, isK):
        A(f"    s_mov_b32 s{SIT}, 0")
        A(f"L_{nm}:")
        for b in range(NB):
            A(f"    s_waitcnt vmcnt({PER + (1 if fb and plast else 0)})")
            if fb and not plast:
                A(f"    v_add_u32 v{VPS}, v{VPS}, v{VPL[b]}")
            compute(b, isK)
            mw = mid_plain(mid + (1 if fb else 0)) if ((isK and not kctl) or not fb) else mid_ctl
            if isK:
                loads(b, 'K', mw)
            else:
                stub, back = lab("stub"), lab("back")
                A(f"    s_cmp_eq_u32 s{SCNT}, {4*BPM}")
                A(f"    s_cbranch_scc1 {stub if b == 0 else back}")
                loads(b, None, mw)
                A(f"{back}:")
                if b == 0:
                    stubs.append([f"{stub}:", "    s_waitcnt vmcnt(0)", f"    s_branch {back}"])
        stamp(True)
        A(f"    s_add_u32 s{SIT}, s{SIT}, 1")
        A(f"    s_cmp_lt_u32 s{SIT}, s{SNIT}")
        A(f"    s_cbranch_scc1 L_{nm}")
        flush_stubs()

    def exchange():
        A("    s_nop 7")
        for e in range(8):
            a = ACC + 4 * e
            A(f"    ds_write_b128 v{VLDS_W}, v[{a}:{a+3}] offset:{e*1024}")
        A("    s_waitcnt lgkmcnt(0)")
        A("    s_barrier")
        for e in range(8):
            A(f"    ds_read_b128 v[{Y+4*e}:{Y+4*e+3}], v{VLDS_R} offset:{e*1024}")
        for e in range(8):
            a, t = ACC + 4 * e, Y + 4 * e
            A(f"    s_waitcnt lgkmcnt({7-e})")
            A(f"    v_pk_add_f32 v[{a}:{a+1}], v[{a}:{a+1}], v[{t}:{t+1}]")
            A(f"    v_pk_add_f32 v[{a+2}:{a+3}], v[{a+2}:{a+3}], v[{t+2}:{t+3}]")

    def next_slot():
        A(f"    v_xor_b32 v{VLDS_W}, {SLOT}, v{VLDS_W}")
        A(f"    v_xor_b32 v{VLDS_R}, {SLOT}, v{VLDS_R}")

    NI = BPM // NB
    A(f"    s_mov_b32 s{SMAT}, 0")
    A(f"    s_mov_b32 s{SNIT}, {NI}")
    A("L_kouter:")
    zero_acc()
    loop("kloop", True)
    exchange()
    for i in range(4):
        A(f"    ds_read_b128 v[{Q+4*i}:{Q+4*i+3}], v{VLDS_Q} offset:{16*i}")
    for i in range(4):
        for p in range(4):
            A(f"    v_cvt_pk_bf16_f32 v{X+4*i+p}, v{ACC+4*(2*p)+i}, v{ACC+4*(2*p+1)+i}")
    S, U = T[0], T[1]
    A(f"    s_waitcnt lgkmcnt(0)")
    for i in range(4):
        c = "0" if i == 0 else f"v[{S}:{S+3}]"
        A(f"    v_mfma_f32_16x16x32_bf16 v[{S}:{S+3}], v[{X+4*i}:{X+4*i+3}], v[{Q+4*i}:{Q+4*i+3}], {c}")
    A("    s_nop 7")
    A(f"    v_cvt_pk_bf16_f32 v{U}, v{S}, v{S+1}")
    A(f"    v_cvt_pk_bf16_f32 v{U+1}, v{S+2}, v{S+3}")
    A(f"    v_lshlrev_b32 v{S}, 16, v{U}")
    A(f"    v_and_b32 v{S+1}, s61, v{U}")
    A(f"    v_lshlrev_b32 v{S+2}, 16, v{U+1}")
    A(f"    v_and_b32 v{S+3}, s61, v{U+1}")
    for i in range(4):
        A(f"    v_mul_f32 v{S+i}, s60, v{S+i}")
    A(f"    v_cvt_pk_bf16_f32 v{U}, v{S}, v{S+1}")
    A(f"    v_cvt_pk_bf16_f32 v{U+1}, v{S+2}, v{S+3}")
    A(f"    v_lshlrev_b32 v{S}, 16, v{U}")
    A(f"    v_and_b32 v{S+1}, s61, v{U}")
    A(f"    v_lshlrev_b32 v{S+2}, 16, v{U+1}")
    A(f"    v_and_b32 v{S+3}, s61, v{U+1}")
    M, M2 = U, U + 1
    A(f"    v_max_f32 v{M}, v{S}, v{S+1}")
    A(f"    v_max3_f32 v{M}, v{M}, v{S+2}, v{S+3}")
    def xreduce(op):
        A(f"    v_mov_b32 v{M2}, v{M}")
        A("    s_nop 1")
        A(f"    v_permlane16_swap_b32 v{M}, v{M2}")
        A(f"    {op} v{M}, v{M}, v{M2}")
        A(f"    v_mov_b32 v{M2}, v{M}")
        A("    s_nop 1")
        A(f"    v_permlane32_swap_b32 v{M}, v{M2}")
        A(f"    {op} v{M}, v{M}, v{M2}")
    xreduce("v_max_f32")
    for i in range(4):
        A(f"    v_sub_f32 v{S+i}, v{S+i}, v{M}")
    for i in range(4):
        A(f"    v_mul_f32 v{S+i}, s62, v{S+i}")
    for i in range(4):
        A(f"    v_exp_f32 v{S+i}, v{S+i}")
    A("    s_nop 0")
    A(f"    v_add_f32 v{M}, v{S}, v{S+1}")
    A(f"    v_add_f32 v{M2}, v{S+2}, v{S+3}")
    A(f"    v_add_f32 v{M}, v{M}, v{M2}")
    xreduce("v_add_f32")
    A(f"    v_rcp_f32 v{M}, v{M}")
    A("    s_nop 0")
    for i in range(4):
        A(f"    v_mul_f32 v{S+i}, v{S+i}, v{M}")
    A(f"    v_mov_b32 v{P0}, v{P1}")
    A(f"    v_mov_b32 v{P0+1}, v{P1+1}")
    A(f"    v_cvt_pk_bf16_f32 v{P1}, v{S}, v{S+1}")
    A(f"    v_cvt_pk_bf16_f32 v{P1+1}, v{S+2}, v{S+3}")
    if pfe:
        A(f"    s_cmp_lg_u32 s{SMAT}, {0 if pfe == 1 else 1}")
        A("    s_cbranch_scc1 L_nopf")
        A(f"    s_mov_b32 s{SQ}, s{SFB}")
        A(f"    s_mov_b32 s{SQ+1}, s{SFB+1}")
        A(f"    s_mov_b32 s{SQ+2}, 0x20000")
        A(f"    buffer_load_dwordx4 v[{Y}:{Y+3}], v{VPF}, s[{SQ}:{SQ+3}], s67 offen")
        A(f"    buffer_load_dwordx4 v[{Y+4}:{Y+7}], v{VPF}, s[{SQ}:{SQ+3}], s67 offen offset:1024")
        A("L_nopf:")
    next_slot()
    A(f"    v_add_u32 v{VLDS_Q}, 0x2000, v{VLDS_Q}")
    A(f"    s_add_u32 s{SMAT}, s{SMAT}, 1")
    A(f"    s_cmp_lt_u32 s{SMAT}, 2")
    A("    s_cbranch_scc1 L_kouter")
    A(f"    s_mov_b32 s{SMAT}, 0")
    A("L_vouter:")
    zero_acc()
    loop("vloop", False)
    if est:
        A(f"    s_cmp_eq_u32 s{SMAT}, 0")
        A("    s_cbranch_scc1 L_noest")
        for i in range(4):
            r = Q + 4 * i
            A(f"    buffer_store_dwordx4 v[{r}:{r+3}], v{VOFF_O}, s[{SO}:{SO+3}], 0 offen offset:{256*i} nt")
        A("L_noest:")
    exchange()
    for e in range(8):
        a = ACC + 4 * e
        A(f"    v_cvt_pk_bf16_f32 v{X+2*e}, v{a}, v{a+1}")
        A(f"    v_cvt_pk_bf16_f32 v{X+2*e+1}, v{a+2}, v{a+3}")
    A("    s_nop 1")
    for e in range(8):
        o = Y + 4 * e
        A(f"    v_mfma_f32_16x16x16_bf16 v[{o}:{o+3}], v[{P0}:{P0+1}], v[{X+2*e}:{X+2*e+1}], 0")
    A("    s_nop 7")
    A(f"    s_cmp_lg_u32 s{SMAT}, 0")
    A("    s_cbranch_scc1 L_vlast")
    for i in range(4):
        r = Q + 4 * i
        for p in range(4):
            A(f"    v_cvt_pk_bf16_f32 v{r+p}, v{Y+4*(2*p)+i}, v{Y+4*(2*p+1)+i}")
    A(f"    v_mov_b32 v{P0}, v{P1}")
    A(f"    v_mov_b32 v{P0+1}, v{P1+1}")
    next_slot()
    A(f"    s_mov_b32 s{SMAT}, 1")
    A("    s_branch L_vouter")
    A("L_vlast:")
    A(f"    s_movk_i32 s{SOOFF}, 0x2000")
    if not est:
        for i in range(4):
            r = Q + 4 * i
            A(f"    buffer_store_dwordx4 v[{r}:{r+3}], v{VOFF_O}, s[{SO}:{SO+3}], 0 offen offset:{256*i} nt")
    for i in range(4):
        r = ACC + 4 * i
        for p in range(4):
            A(f"    v_cvt_pk_bf16_f32 v{r+p}, v{Y+4*(2*p)+i}, v{Y+4*(2*p+1)+i}")
        A(f"    buffer_store_dwordx4 v[{r}:{r+3}], v{VOFF_O}, s[{SO}:{SO+3}], s{SOOFF} offen offset:{256*i} nt")
    if ts:
        stamp()
        A("    s_getreg_b32 s60, hwreg(HW_REG_XCC_ID)")
        A("    s_getreg_b32 s61, hwreg(HW_REG_HW_ID)")
        A(f"    v_writelane_b32 v{VTS}, s60, 62")
        A(f"    v_writelane_b32 v{VTS}, s61, 63")
        A(f"    s_mul_i32 s62, s2, {W*256}")
        A("    s_add_u32 s58, s58, s62")
        A("    s_addc_u32 s59, s59, 0")
        A("    v_lshlrev_b32 v120, 2, v0")
        A(f"    global_store_dword v120, v{VTS}, s[58:59]")
    A("L_end:")
    A("    s_endpgm")
    A('.section .rodata,"a"')
    A(".p2align 6")
    A(f".amdhsa_kernel {NAME}_kernel")
    A(f"  .amdhsa_next_free_vgpr {NV}")
    A("  .amdhsa_next_free_sgpr 72")
    A(f"  .amdhsa_accum_offset {min(256,(NV+3)//4*4)}")
    A("  .amdhsa_group_segment_fixed_size 0")
    A("  .amdhsa_kernarg_size 64")
    A("  .amdhsa_user_sgpr_count 2")
    A("  .amdhsa_user_sgpr_kernarg_segment_ptr 1")
    A("  .amdhsa_system_sgpr_workgroup_id_x 1")
    A(".end_amdhsa_kernel")
    return "\n".join(L) + "\n"


if __name__ == "__main__":
    ap = argparse.ArgumentParser()
    for k, d in dict(mid=10, wlen=16, mark=4, med=3, s0=6, gain=12, sgain=3, slowc=8, ts=0, tsdiv=4, ldsx=98304, dbg=0, boostc=-1, pfe=1, am=-12, phalf=0, plast=1, est=1).items():
        ap.add_argument("--" + k, type=int, default=d)
    ap.add_argument('--rounds', default='112,176')
    ap.add_argument("-o", default="-")
    a = vars(ap.parse_args())
    o = a.pop("o")
    s = gen(**a)
    (sys.stdout if o == "-" else open(o, "w")).write(s)
```

```python
import sys, argparse

NAME = "standalone__low_rank_proj_linformer__sampling"
HEADER = open('cdna_kernels/' + NAME + '.s.ref').read().split('; @launch')[0]

DOC = """; ---------------------------------------------------------------------------------------------------------
; ---------------------------------------------------------------------------------------------------------
"""


def gen(mid=10, rounds='144,208', wlen=16, mark=4, med=3, s0=7, gain=10, sgain=4, slowc=8, ts=0, tsdiv=4, ldsx=98304,
        am=-12, lastfree=1, mov64=1, warmv=0):
    rl = [int(x) for x in rounds.split(',')] if rounds else []
    fb = 1 if rl else 0
    assert not fb or rl[0] + am >= 132
    W, NB = 2, 2
    L = []
    A = L.append
    BPM = 64
    SLOT = W * 8192
    QBASE = 2 * SLOT
    lds = max(QBASE + 16384, ldsx)
    A(HEADER + f"; @launch grid=(256,1,1) block=(128,1,1) lds={lds}")
    A(DOC.rstrip())
    A('.amdgcn_target "amdgcn-amd-amdhsa--gfx950"')
    A(".text")
    A(f".globl {NAME}_kernel")
    A(".p2align 8")
    A(f".type {NAME}_kernel,@function")
    A(f"{NAME}_kernel:")
    VOFF_D, VOFF_E, VLDS_Q, VOFF_O, VTS, VLDS_W, VLDS_R = 1, 2, 3, 4, 5, 6, 7
    ACC = 8
    T = [40, 44]
    P0, P1 = 48, 50
    VPL = [52, 53]
    VPS, VPO = 54, 55
    X = 56
    Q = 72
    Y = 88
    BUF0 = 120
    def bufd(b, i): return BUF0 + 36 * b + 4 * i
    def bufe(b): return BUF0 + 36 * b + 32
    NV = BUF0 + 36 * NB
    VAT, VPF, VONE = NV, NV + 1, NV + 2
    NV += 3
    SD, SP, SQ, SO, SG = 16, 20, 24, 28, 32
    SVB, SFB = 36, 38
    SSEL0, SSEL1, SIT, SDOFF, SEOFF, SWAVE, SMAT, SCNT, SOOFF = 40, 41, 42, 43, 44, 45, 46, 47, 49
    SCTL, SREP, STS = 56, 57, 63
    SWIN, SPO, SLIST, SPFO, SH = 64, 65, 66, 67, 68
    uid = [0]
    def lab(p):
        uid[0] += 1
        return f"L_{p}{uid[0]}"

    def stamp(inloop=False):
        if not ts:
            return
        lbl = lab("ts")
        if inloop and tsdiv > 1:
            A(f"    s_and_b32 s52, s{SIT}, {tsdiv-1}")
            A(f"    s_cmp_lg_u32 s52, {tsdiv-1}")
            A(f"    s_cbranch_scc1 {lbl}")
        A("    s_memrealtime s[50:51]")
        A(f"    s_mov_b32 m0, s{STS}")
        A("    s_waitcnt lgkmcnt(0)")
        A(f"    v_writelane_b32 v{VTS}, s50, m0")
        A(f"    s_add_u32 s{STS}, s{STS}, 1")
        A(f"{lbl}:")

    A("    s_cmp_ge_u32 s2, 256")
    A("    s_cbranch_scc1 L_end")
    if ts:
        A(f"    s_mov_b32 s{STS}, 0")
        A(f"    v_mov_b32 v{VTS}, 0")
        stamp()
    A("    s_load_dwordx8 s[4:11], s[0:1], 0           ; q, k, v, e_proj")
    A("    s_load_dwordx4 s[12:15], s[0:1], 32")
    A(f"    s_load_dwordx2 s[{SG}:{SG+1}], s[0:1], 48         ; debug")
    if ts:
        A("    s_load_dwordx2 s[58:59], s[0:1], 56")
    A("    v_lshrrev_b32 v8, 6, v0                     ; wave")
    A("    v_and_b32 v9, 15, v0                        ; lane & 15")
    A("    v_bfe_u32 v10, v0, 4, 2                     ; g = lane >> 4")
    A(f"    v_readfirstlane_b32 s{SWAVE}, v8")
    A(f"    v_lshlrev_b32 v{VOFF_D}, 13, v8")
    A(f"    v_lshl_add_u32 v{VOFF_D}, v10, 11, v{VOFF_D}")
    A(f"    v_lshl_add_u32 v{VOFF_D}, v9, 4, v{VOFF_D}")
    A(f"    v_lshlrev_b32 v{VOFF_E}, 13, v9")
    A(f"    v_lshl_add_u32 v{VOFF_E}, v10, 4, v{VOFF_E}")
    A(f"    v_lshl_add_u32 v{VOFF_E}, v8, 6, v{VOFF_E}")
    A("    s_lshl_b32 s3, s2, 21")
    A("    s_lshl_b32 s55, s2, 14")
    A(f"    s_mov_b32 s{SD+2}, 0x200000")
    A(f"    s_mov_b32 s{SD+3}, 0x20000")
    A(f"    s_mov_b32 s{SP+2}, 0x20000")
    A(f"    s_mov_b32 s{SP+3}, 0x20000")
    A(f"    s_mov_b32 s{SDOFF}, 0")
    A(f"    s_mov_b32 s{SEOFF}, 0")
    A(f"    s_mov_b32 s{SCNT}, 0")
    A("    s_waitcnt lgkmcnt(0)")
    A(f"    s_add_u32 s{SD}, s6, s3")
    A(f"    s_addc_u32 s{SD+1}, s7, 0")
    A(f"    s_mov_b32 s{SP}, s10")
    A(f"    s_mov_b32 s{SP+1}, s11")

    stubs = []
    def poll(b):
        A(f"    buffer_load_dword v{VPL[b]}, v{VPO}, s[{SG}:{SG+3}], s{SPO} offen sc1")

    def loads(b, isK, midwait):
        for i in range(8):
            r = bufd(b, i)
            off = f" offset:{i*256}" if i else ""
            if i == 4 and midwait:
                midwait()
            A(f"    buffer_load_dwordx4 v[{r}:{r+3}], v{VOFF_D}, s[{SD}:{SD+3}], s{SDOFF} offen{off} nt")
        A(f"    buffer_load_dwordx4 v[{bufe(b)}:{bufe(b)+3}], v{VOFF_E}, s[{SP}:{SP+3}], s{SEOFF} offen")
        if fb and not isK:
            A(f"    v_add_u32 v{VPS}, v{VPS}, v{VPL[b]}")
            poll(b)
        A(f"    s_add_u32 s{SDOFF}, s{SDOFF}, {hex(W*0x2000)}")
        A(f"    s_add_u32 s{SEOFF}, s{SEOFF}, {W*64}")
        A(f"    s_and_b32 s{SEOFF}, s{SEOFF}, 0x1fff")
        A(f"    s_add_u32 s{SCNT}, s{SCNT}, 1")
        if isK and midwait and b == 1:
            A(f"    s_cmp_eq_u32 s{SCNT}, {2*BPM}")
            A(f"    s_cselect_b64 s[{SD}:{SD+1}], s[{SVB}:{SVB+1}], s[{SD}:{SD+1}]")
            A(f"    s_cselect_b64 s[{SP}:{SP+1}], s[{SFB}:{SFB+1}], s[{SP}:{SP+1}]")
            A(f"    s_cselect_b32 s{SDOFF}, 0, s{SDOFF}")
        if fb and not isK and b == 1:
            A(f"    s_sub_u32 s52, s{SCNT}, s{SWIN}")
            A(f"    s_cmp_lt_u32 s52, {wlen}")
            A(f"    s_cselect_b32 s{SG+2}, 128, 0")
            stub, back, chk = lab("rp"), lab("rb"), lab("rc")
            A(f"    s_cmp_eq_u32 s{SREP}, 0")
            A(f"    s_cbranch_scc1 {stub}")
            A(f"{back}:")
            dst, dbk = lab("dc"), lab("db")
            A(f"    s_cmp_eq_u32 s52, {wlen+2}")
            A(f"    s_cbranch_scc1 {dst}")
            A(f"{dbk}:")
            stubs.append([f"{dst}:                                      ; window consumed: lateness -> number of widened / narrowed groups",
                f"    v_readfirstlane_b32 s53, v{VPS}",
                f"    v_mov_b32 v{VPS}, 0",
                f"    s_add_u32 s{SPO}, s{SPO}, 4",
                f"    s_sub_i32 s53, s53, {s0}",
                f"    s_mul_i32 s54, s53, {gain}",
                f"    s_mul_i32 s{SCTL}, s53, {sgain}",
                f"    s_cmp_gt_i32 s53, 0",
                f"    s_cselect_b32 s{SCTL}, s54, s{SCTL}",
                f"    s_and_b32 s{SWIN}, s{SLIST}, 0xff",
                f"    s_cselect_b32 s{SWIN}, s{SWIN}, 0x10000",
                f"    s_lshr_b32 s{SLIST}, s{SLIST}, 8",
                f"    s_branch {dbk}"])
            stubs.append([f"{stub}:                                      ; representatives: count in, the median arriver publishes the mark",
                f"    s_cmp_eq_u32 s52, {mark+4}",
                f"    s_cbranch_scc1 {chk}",
                f"    s_cmp_lg_i32 s52, {am}",
                f"    s_cbranch_scc1 {back}",
                f"    v_mov_b32 v{VAT}, 1",
                f"    s_mov_b64 exec, 1",
                f"    buffer_atomic_add v{VAT}, off, s[{SH}:{SH+3}], s{SPO} offset:128 sc0 sc1",
                f"    s_mov_b64 exec, -1",
                f"    s_branch {back}",
                f"{chk}:",
                f"    v_readfirstlane_b32 s53, v{VAT}",
                f"    v_mov_b32 v{VONE}, 1",
                f"    s_cmp_lg_u32 s53, {med}",
                f"    s_cbranch_scc1 {back}",
                f"    s_mov_b64 exec, 1",
                f"    buffer_store_dword v{VONE}, off, s[{SH}:{SH+3}], s{SPO} sc1",
                f"    s_mov_b64 exec, -1",
                f"    s_branch {back}"])

    def perms(b, e):
        w, h = e >> 1, e & 1
        t = T[e & 1]
        sel = SSEL1 if h else SSEL0
        for q in range(4):
            lo_ = bufd(b, 2 * q) + w
            hi_ = bufd(b, 2 * q + 1) + w
            A(f"    v_perm_b32 v{t+q}, v{hi_}, v{lo_}, s{sel}")

    def mfma(b, e, isK):
        t = T[e & 1]
        a = ACC + 4 * e
        eb = bufe(b)
        if isK:
            A(f"    v_mfma_f32_16x16x32_bf16 v[{a}:{a+3}], v[{t}:{t+3}], v[{eb}:{eb+3}], v[{a}:{a+3}]")
        else:
            A(f"    v_mfma_f32_16x16x32_bf16 v[{a}:{a+3}], v[{eb}:{eb+3}], v[{t}:{t+3}], v[{a}:{a+3}]")

    def compute(b, isK):
        perms(b, 0)
        for e in range(8):
            if e < 7:
                perms(b, e + 1)
            else:
                A("    s_nop 1")
            mfma(b, e, isK)

    for b in range(NB):
        loads(b, True, None)
    A(f"    s_add_u32 s{SQ}, s4, s55")
    A(f"    s_addc_u32 s{SQ+1}, s5, 0")
    A(f"    s_mov_b32 s{SQ+2}, 0x4000")
    A(f"    s_mov_b32 s{SQ+3}, 0x20000")
    A(f"    s_lshl_b32 s53, s{SWAVE}, 13")
    A(f"    v_and_b32 v12, 63, v0")
    A(f"    v_lshlrev_b32 v{VPF}, 4, v12                  ; lane * 16")
    for j0 in range(0, 8, 4):
        A(f"    s_add_u32 s54, s53, {QBASE}")
        A("    s_mov_b32 m0, s54")
        A("    s_nop 0")
        for j in range(4):
            off = f" offset:{j*1024}" if j else ""
            A(f"    buffer_load_dwordx4 v{VPF}, s[{SQ}:{SQ+3}], s53 offen{off} nt lds")
        if j0 == 0:
            A(f"    s_add_u32 s53, s53, 0x1000")
    A(f"    s_lshr_b32 s{SPFO}, s2, 3")
    A(f"    s_lshl_b32 s{SPFO}, s{SPFO}, 1")
    A(f"    s_add_u32 s{SPFO}, s{SPFO}, s{SWAVE}")
    A(f"    s_lshl_b32 s{SPFO}, s{SPFO}, 11")
    A(f"    buffer_load_dwordx4 v[{Y}:{Y+3}], v{VPF}, s[{SP}:{SP+3}], s{SPFO} offen")
    A(f"    buffer_load_dwordx4 v[{Y+4}:{Y+7}], v{VPF}, s[{SP}:{SP+3}], s{SPFO} offen offset:1024")
    A(f"    s_add_u32 s{SVB}, s8, s3")
    A(f"    s_addc_u32 s{SVB+1}, s9, 0")
    A(f"    s_mov_b32 s{SFB}, s12")
    A(f"    s_mov_b32 s{SFB+1}, s13")
    A(f"    s_add_u32 s{SO}, s14, s55")
    A(f"    s_addc_u32 s{SO+1}, s15, 0")
    A(f"    s_mov_b32 s{SO+2}, 0x4000")
    A(f"    s_mov_b32 s{SO+3}, 0x20000")
    if warmv:
        A(f"    s_load_dword s53, s[{SVB}:{SVB+1}], 0")
        A(f"    s_load_dword s54, s[{SO}:{SO+1}], 0")
    if fb:
        A(f"    s_mov_b32 s{SG+2}, 0")
        A(f"    s_mov_b32 s{SG+3}, 0x20000")
        A(f"    s_mov_b32 s{SH}, s{SG}")
        A(f"    s_mov_b32 s{SH+1}, s{SG+1}")
        A(f"    s_mov_b32 s{SH+2}, 256")
        A(f"    s_mov_b32 s{SH+3}, 0x20000")
        A(f"    s_mov_b32 s{SWIN}, {rl[0]}")
        A(f"    s_mov_b32 s{SLIST}, {hex(sum(v << (8*i) for i, v in enumerate(rl[1:])))}")
        A(f"    s_mov_b32 s{SPO}, 0")
        A(f"    s_mov_b32 s{SCTL}, 0")
        A(f"    s_cmp_lt_u32 s2, 8")
        A(f"    s_cselect_b32 s{SREP}, s{SWAVE}, 1")
        A(f"    v_mov_b32 v{VPS}, 0")
        A(f"    v_mov_b32 v{VPL[0]}, 0")
        A(f"    v_mov_b32 v{VPL[1]}, 0")
        A(f"    v_lshlrev_b32 v{VPO}, 8, v12")
    A(f"    s_mov_b32 s{SSEL0}, 0x05040100")
    A(f"    s_mov_b32 s{SSEL1}, 0x07060302")
    A("    s_mov_b32 s60, 0x3db504f3                   ; 128^-0.5")
    A("    s_mov_b32 s61, 0xffff0000")
    A("    s_mov_b32 s62, 0x3fb8aa3b                   ; log2(e)")
    A(f"    v_lshl_add_u32 v{VLDS_W}, v8, 13, v{VPF}")
    A(f"    v_xor_b32 v{VLDS_R}, 0x2000, v{VLDS_W}")
    A(f"    v_lshlrev_b32 v{VLDS_Q}, 12, v8")
    A(f"    v_lshl_add_u32 v{VLDS_Q}, v9, 8, v{VLDS_Q}")
    A(f"    v_lshl_add_u32 v{VLDS_Q}, v10, 6, v{VLDS_Q}")
    A(f"    v_add_u32 v{VLDS_Q}, {QBASE}, v{VLDS_Q}")
    A(f"    v_lshlrev_b32 v{VOFF_O}, 12, v8")
    A(f"    v_lshl_add_u32 v{VOFF_O}, v10, 10, v{VOFF_O}")
    A(f"    v_lshl_add_u32 v{VOFF_O}, v9, 4, v{VOFF_O}")
    A(f"    v_mov_b32 v{P1}, 0")
    A(f"    v_mov_b32 v{P1+1}, 0")

    def zero_acc():
        if mov64:
            for i in range(0, 32, 2):
                A(f"    v_mov_b64 v[{ACC+i}:{ACC+i+1}], 0")
        else:
            for i in range(32):
                A(f"    v_mov_b32 v{ACC+i}, 0")

    NI = BPM // NB
    def midwait(isK, b):
        c = mid + (1 if fb and not isK else 0)
        def f():
            back = lab("cb")
            if lastfree and b == 1:
                A(f"    s_cmp_eq_u32 s{SIT}, {NI-1}")
                A(f"    s_cbranch_scc1 {back}")
            if fb and not isK:
                stub, sl = lab("cs"), lab("sl")
                A(f"    s_cmp_lg_u32 s{SCTL}, 0")
                A(f"    s_cbranch_scc1 {stub}")
                stubs.append([f"{stub}:",
                    f"    s_cmp_lt_i32 s{SCTL}, 0",
                    f"    s_cbranch_scc1 {sl}",
                    f"    s_sub_u32 s{SCTL}, s{SCTL}, 1",
                    f"    s_branch {back}",
                    f"{sl}:",
                    f"    s_add_u32 s{SCTL}, s{SCTL}, 1",
                    f"    s_waitcnt vmcnt({slowc+1})",
                    f"    s_branch {back}"])
            A(f"    s_waitcnt vmcnt({c})")
            A(f"{back}:")
        return f

    def flush_stubs():
        if stubs:
            after = lab("after")
            A(f"    s_branch {after}")
            for c in stubs:
                for l in c:
                    A(l)
            A(f"{after}:")
            stubs.clear()

    def loop(nm, isK):
        A(f"    s_mov_b32 s{SIT}, 0")
        A(f"L_{nm}:")
        for b in range(NB):
            A(f"    s_waitcnt vmcnt({9 if (isK or not fb) else 11})")
            compute(b, isK)
            if isK:
                loads(b, True, midwait(True, b))
            else:
                stub, back = lab("stub"), lab("back")
                A(f"    s_cmp_eq_u32 s{SCNT}, {4*BPM}")
                A(f"    s_cbranch_scc1 {stub if b == 0 else back}")
                loads(b, False, midwait(False, b))
                A(f"{back}:")
                if b == 0:
                    stubs.append([f"{stub}:", "    s_waitcnt vmcnt(0)", f"    s_branch {back}"])
        stamp(True)
        A(f"    s_add_u32 s{SIT}, s{SIT}, 1")
        A(f"    s_cmp_lt_u32 s{SIT}, {NI}")
        A(f"    s_cbranch_scc1 L_{nm}")
        flush_stubs()

    def exchange():
        A("    s_nop 7")
        for e in range(8):
            a = ACC + 4 * e
            A(f"    ds_write_b128 v{VLDS_W}, v[{a}:{a+3}] offset:{e*1024}")
        A("    s_waitcnt lgkmcnt(0)")
        A("    s_barrier")
        for e in range(8):
            A(f"    ds_read_b128 v[{Y+4*e}:{Y+4*e+3}], v{VLDS_R} offset:{e*1024}")

    def addp(extra=0):
        for e in range(8):
            a, t = ACC + 4 * e, Y + 4 * e
            A(f"    s_waitcnt lgkmcnt({7-e+extra})")
            A(f"    v_pk_add_f32 v[{a}:{a+1}], v[{a}:{a+1}], v[{t}:{t+1}]")
            A(f"    v_pk_add_f32 v[{a+2}:{a+3}], v[{a+2}:{a+3}], v[{t+2}:{t+3}]")

    def next_slot():
        A(f"    v_xor_b32 v{VLDS_W}, {SLOT}, v{VLDS_W}")
        A(f"    v_xor_b32 v{VLDS_R}, {SLOT}, v{VLDS_R}")

    A(f"    s_mov_b32 s{SMAT}, 0")
    A("L_kouter:")
    zero_acc()
    loop("kloop", True)
    exchange()
    for i in range(4):
        A(f"    ds_read_b128 v[{Q+4*i}:{Q+4*i+3}], v{VLDS_Q} offset:{16*i}")
    addp(4)
    for i in range(4):
        for p in range(4):
            A(f"    v_cvt_pk_bf16_f32 v{X+4*i+p}, v{ACC+4*(2*p)+i}, v{ACC+4*(2*p+1)+i}")
    S, U = T[0], T[1]
    A(f"    s_waitcnt lgkmcnt(0)")
    for i in range(4):
        c = "0" if i == 0 else f"v[{S}:{S+3}]"
        A(f"    v_mfma_f32_16x16x32_bf16 v[{S}:{S+3}], v[{X+4*i}:{X+4*i+3}], v[{Q+4*i}:{Q+4*i+3}], {c}")
    A("    s_nop 7")
    A(f"    v_cvt_pk_bf16_f32 v{U}, v{S}, v{S+1}")
    A(f"    v_cvt_pk_bf16_f32 v{U+1}, v{S+2}, v{S+3}")
    A(f"    v_lshlrev_b32 v{S}, 16, v{U}")
    A(f"    v_and_b32 v{S+1}, s61, v{U}")
    A(f"    v_lshlrev_b32 v{S+2}, 16, v{U+1}")
    A(f"    v_and_b32 v{S+3}, s61, v{U+1}")
    for i in range(4):
        A(f"    v_mul_f32 v{S+i}, s60, v{S+i}")
    A(f"    v_cvt_pk_bf16_f32 v{U}, v{S}, v{S+1}")
    A(f"    v_cvt_pk_bf16_f32 v{U+1}, v{S+2}, v{S+3}")
    A(f"    v_lshlrev_b32 v{S}, 16, v{U}")
    A(f"    v_and_b32 v{S+1}, s61, v{U}")
    A(f"    v_lshlrev_b32 v{S+2}, 16, v{U+1}")
    A(f"    v_and_b32 v{S+3}, s61, v{U+1}")
    M, M2 = U, U + 1
    A(f"    v_max_f32 v{M}, v{S}, v{S+1}")
    A(f"    v_max3_f32 v{M}, v{M}, v{S+2}, v{S+3}")
    def xreduce(op):
        A(f"    v_mov_b32 v{M2}, v{M}")
        A("    s_nop 1")
        A(f"    v_permlane16_swap_b32 v{M}, v{M2}")
        A(f"    {op} v{M}, v{M}, v{M2}")
        A(f"    v_mov_b32 v{M2}, v{M}")
        A("    s_nop 1")
        A(f"    v_permlane32_swap_b32 v{M}, v{M2}")
        A(f"    {op} v{M}, v{M}, v{M2}")
    xreduce("v_max_f32")
    for i in range(4):
        A(f"    v_sub_f32 v{S+i}, v{S+i}, v{M}")
    for i in range(4):
        A(f"    v_mul_f32 v{S+i}, s62, v{S+i}")
    for i in range(4):
        A(f"    v_exp_f32 v{S+i}, v{S+i}")
    A("    s_nop 0")
    A(f"    v_add_f32 v{M}, v{S}, v{S+1}")
    A(f"    v_add_f32 v{M2}, v{S+2}, v{S+3}")
    A(f"    v_add_f32 v{M}, v{M}, v{M2}")
    xreduce("v_add_f32")
    A(f"    v_rcp_f32 v{M}, v{M}")
    A("    s_nop 0")
    for i in range(4):
        A(f"    v_mul_f32 v{S+i}, v{S+i}, v{M}")
    A(f"    v_mov_b32 v{P0}, v{P1}")
    A(f"    v_mov_b32 v{P0+1}, v{P1+1}")
    A(f"    v_cvt_pk_bf16_f32 v{P1}, v{S}, v{S+1}")
    A(f"    v_cvt_pk_bf16_f32 v{P1+1}, v{S+2}, v{S+3}")
    next_slot()
    A(f"    s_cmp_lg_u32 s{SMAT}, 0")
    A("    s_cbranch_scc1 L_kdone")
    A(f"    s_mov_b32 s{SQ}, s{SFB}")
    A(f"    s_mov_b32 s{SQ+1}, s{SFB+1}")
    A(f"    s_mov_b32 s{SQ+2}, 0x20000")
    A(f"    buffer_load_dwordx4 v[{Y}:{Y+3}], v{VPF}, s[{SQ}:{SQ+3}], s{SPFO} offen")
    A(f"    buffer_load_dwordx4 v[{Y+4}:{Y+7}], v{VPF}, s[{SQ}:{SQ+3}], s{SPFO} offen offset:1024")
    A(f"    v_add_u32 v{VLDS_Q}, 0x2000, v{VLDS_Q}")
    A(f"    s_mov_b32 s{SMAT}, 1")
    A("    s_branch L_kouter")
    A("L_kdone:")
    A(f"    s_mov_b32 s{SMAT}, 0")
    if fb:
        A("    ; two (empty) polls behind the groups in flight make the V loop's wait counts exact from its first pass")
        poll(0)
        poll(1)
    A("L_vouter:")
    zero_acc()
    loop("vloop", False)
    A(f"    s_cmp_eq_u32 s{SMAT}, 0")
    A("    s_cbranch_scc1 L_noest")
    for i in range(4):
        r = Q + 4 * i
        A(f"    buffer_store_dwordx4 v[{r}:{r+3}], v{VOFF_O}, s[{SO}:{SO+3}], 0 offen offset:{256*i} nt")
    A("L_noest:")
    exchange()
    addp()
    for e in range(8):
        a = ACC + 4 * e
        A(f"    v_cvt_pk_bf16_f32 v{X+2*e}, v{a}, v{a+1}")
        A(f"    v_cvt_pk_bf16_f32 v{X+2*e+1}, v{a+2}, v{a+3}")
    A("    s_nop 1")
    for e in range(8):
        o = Y + 4 * e
        A(f"    v_mfma_f32_16x16x16_bf16 v[{o}:{o+3}], v[{P0}:{P0+1}], v[{X+2*e}:{X+2*e+1}], 0")
    A("    s_nop 7")
    A(f"    s_cmp_lg_u32 s{SMAT}, 0")
    A("    s_cbranch_scc1 L_vlast")
    for i in range(4):
        r = Q + 4 * i
        for p in range(4):
            A(f"    v_cvt_pk_bf16_f32 v{r+p}, v{Y+4*(2*p)+i}, v{Y+4*(2*p+1)+i}")
    A(f"    v_mov_b32 v{P0}, v{P1}")
    A(f"    v_mov_b32 v{P0+1}, v{P1+1}")
    next_slot()
    A(f"    s_mov_b32 s{SMAT}, 1")
    A("    s_branch L_vouter")
    A("L_vlast:")
    A(f"    s_movk_i32 s{SOOFF}, 0x2000")
    for i in range(4):
        r = ACC + 4 * i
        for p in range(4):
            A(f"    v_cvt_pk_bf16_f32 v{r+p}, v{Y+4*(2*p)+i}, v{Y+4*(2*p+1)+i}")
        A(f"    buffer_store_dwordx4 v[{r}:{r+3}], v{VOFF_O}, s[{SO}:{SO+3}], s{SOOFF} offen offset:{256*i} nt")
    if ts:
        stamp()
        A("    s_getreg_b32 s60, hwreg(HW_REG_XCC_ID)")
        A("    s_getreg_b32 s61, hwreg(HW_REG_HW_ID)")
        A(f"    v_writelane_b32 v{VTS}, s60, 62")
        A(f"    v_writelane_b32 v{VTS}, s61, 63")
        A(f"    s_mul_i32 s62, s2, {W*256}")
        A("    s_add_u32 s58, s58, s62")
        A("    s_addc_u32 s59, s59, 0")
        A("    v_lshlrev_b32 v120, 2, v0")
        A(f"    global_store_dword v120, v{VTS}, s[58:59]")
    A("L_end:")
    A("    s_endpgm")
    A('.section .rodata,"a"')
    A(".p2align 6")
    A(f".amdhsa_kernel {NAME}_kernel")
    A(f"  .amdhsa_next_free_vgpr {NV}")
    A("  .amdhsa_next_free_sgpr 72")
    A(f"  .amdhsa_accum_offset {min(256,(NV+3)//4*4)}")
    A("  .amdhsa_group_segment_fixed_size 0")
    A("  .amdhsa_kernarg_size 64")
    A("  .amdhsa_user_sgpr_count 2")
    A("  .amdhsa_user_sgpr_kernarg_segment_ptr 1")
    A("  .amdhsa_system_sgpr_workgroup_id_x 1")
    A("  .amdhsa_float_denorm_mode_32 3")
    A(".end_amdhsa_kernel")
    return "\n".join(L) + "\n"


if __name__ == "__main__":
    ap = argparse.ArgumentParser()
    for k, d in dict(mid=10, wlen=16, mark=4, med=3, s0=7, gain=10, sgain=4, slowc=8, ts=0, tsdiv=4, ldsx=98304, am=-12,
                     lastfree=1, mov64=1, warmv=0).items():
        ap.add_argument("--" + k, type=int, default=d)
    ap.add_argument('--rounds', default='144,208')
    ap.add_argument("-o", default="-")
    a = vars(ap.parse_args())
    o = a.pop("o")
    s = gen(**a)
    (sys.stdout if o == "-" else open(o, "w")).write(s)
```

```python
import sys, argparse

NAME = "standalone__low_rank_proj_linformer__sampling"
HEADER = open('cdna_kernels/' + NAME + '.s.ref').read().split('; @launch')[0]

DOC = """; ---------------------------------------------------------------------------------------------------------
; ---------------------------------------------------------------------------------------------------------
"""


def gen(mid=10, rounds='144,208', wlen=16, mark=4, med=3, s0=7, gain=10, sgain=4, slowc=8, ts=0, tsdiv=4, ldsx=98304,
        am=-12, lastfree=1, mov64=1, warmv=0, until=0, uabs=0):
    rl = [int(x) for x in rounds.split(',')] if rounds else []
    fb = 1 if rl else 0
    assert not fb or rl[0] + am >= 132
    W, NB = 2, 2
    L = []
    A = L.append
    BPM = 64
    SLOT = W * 8192
    QBASE = 2 * SLOT
    lds = max(QBASE + 16384, ldsx)
    A(HEADER + f"; @launch grid=(256,1,1) block=(128,1,1) lds={lds}")
    A(DOC.rstrip())
    A('.amdgcn_target "amdgcn-amd-amdhsa--gfx950"')
    A(".text")
    A(f".globl {NAME}_kernel")
    A(".p2align 8")
    A(f".type {NAME}_kernel,@function")
    A(f"{NAME}_kernel:")
    VOFF_D, VOFF_E, VLDS_Q, VOFF_O, VTS, VLDS_W, VLDS_R = 1, 2, 3, 4, 5, 6, 7
    ACC = 8
    T = [40, 44]
    P0, P1 = 48, 50
    VPL = [52, 53]
    VPS, VPO = 54, 55
    X = 56
    Q = 72
    Y = 88
    BUF0 = 120
    def bufd(b, i): return BUF0 + 36 * b + 4 * i
    def bufe(b): return BUF0 + 36 * b + 32
    NV = BUF0 + 36 * NB
    VAT, VPF, VONE = NV, NV + 1, NV + 2
    NV += 3
    SD, SP, SQ, SO, SG = 16, 20, 24, 28, 32
    SVB, SFB = 36, 38
    SSEL0, SSEL1, SIT, SDOFF, SEOFF, SWAVE, SMAT, SCNT, SOOFF = 40, 41, 42, 43, 44, 45, 46, 47, 49
    SCTL, SREP, STS = 56, 57, 63
    SWIN, SPO, SLIST, SPFO, SH = 64, 65, 66, 67, 68
    uid = [0]
    def lab(p):
        uid[0] += 1
        return f"L_{p}{uid[0]}"

    def stamp(inloop=False):
        if not ts:
            return
        lbl = lab("ts")
        if inloop and tsdiv > 1:
            A(f"    s_and_b32 s52, s{SIT}, {tsdiv-1}")
            A(f"    s_cmp_lg_u32 s52, {tsdiv-1}")
            A(f"    s_cbranch_scc1 {lbl}")
        A("    s_memrealtime s[50:51]")
        A(f"    s_mov_b32 m0, s{STS}")
        A("    s_waitcnt lgkmcnt(0)")
        A(f"    v_writelane_b32 v{VTS}, s50, m0")
        A(f"    s_add_u32 s{STS}, s{STS}, 1")
        A(f"{lbl}:")

    A("    s_cmp_ge_u32 s2, 256")
    A("    s_cbranch_scc1 L_end")
    if ts:
        A(f"    s_mov_b32 s{STS}, 0")
        A(f"    v_mov_b32 v{VTS}, 0")
        stamp()
    if until:
        A("    s_memrealtime s[58:59]")
    A("    s_load_dwordx8 s[4:11], s[0:1], 0           ; q, k, v, e_proj")
    A("    s_load_dwordx4 s[12:15], s[0:1], 32")
    A(f"    s_load_dwordx2 s[{SG}:{SG+1}], s[0:1], 48         ; debug")
    if ts:
        A("    s_load_dwordx2 s[58:59], s[0:1], 56")
    A("    v_lshrrev_b32 v8, 6, v0                     ; wave")
    A("    v_and_b32 v9, 15, v0                        ; lane & 15")
    A("    v_bfe_u32 v10, v0, 4, 2                     ; g = lane >> 4")
    A(f"    v_readfirstlane_b32 s{SWAVE}, v8")
    A(f"    v_lshlrev_b32 v{VOFF_D}, 13, v8")
    A(f"    v_lshl_add_u32 v{VOFF_D}, v10, 11, v{VOFF_D}")
    A(f"    v_lshl_add_u32 v{VOFF_D}, v9, 4, v{VOFF_D}")
    A(f"    v_lshlrev_b32 v{VOFF_E}, 13, v9")
    A(f"    v_lshl_add_u32 v{VOFF_E}, v10, 4, v{VOFF_E}")
    A(f"    v_lshl_add_u32 v{VOFF_E}, v8, 6, v{VOFF_E}")
    A("    s_lshl_b32 s3, s2, 21")
    A("    s_lshl_b32 s55, s2, 14")
    A(f"    s_mov_b32 s{SD+2}, 0x200000")
    A(f"    s_mov_b32 s{SD+3}, 0x20000")
    A(f"    s_mov_b32 s{SP+2}, 0x20000")
    A(f"    s_mov_b32 s{SP+3}, 0x20000")
    A(f"    s_mov_b32 s{SDOFF}, 0")
    A(f"    s_mov_b32 s{SEOFF}, 0")
    A(f"    s_mov_b32 s{SCNT}, 0")
    A("    s_waitcnt lgkmcnt(0)")
    A(f"    s_add_u32 s{SD}, s6, s3")
    A(f"    s_addc_u32 s{SD+1}, s7, 0")
    A(f"    s_mov_b32 s{SP}, s10")
    A(f"    s_mov_b32 s{SP+1}, s11")

    stubs = []
    def poll(b):
        A(f"    buffer_load_dword v{VPL[b]}, v{VPO}, s[{SG}:{SG+3}], s{SPO} offen sc1")

    def loads(b, isK, midwait):
        for i in range(8):
            r = bufd(b, i)
            off = f" offset:{i*256}" if i else ""
            if i == 4 and midwait:
                midwait()
            A(f"    buffer_load_dwordx4 v[{r}:{r+3}], v{VOFF_D}, s[{SD}:{SD+3}], s{SDOFF} offen{off} nt")
        A(f"    buffer_load_dwordx4 v[{bufe(b)}:{bufe(b)+3}], v{VOFF_E}, s[{SP}:{SP+3}], s{SEOFF} offen")
        if fb and not isK:
            A(f"    v_add_u32 v{VPS}, v{VPS}, v{VPL[b]}")
            poll(b)
        A(f"    s_add_u32 s{SDOFF}, s{SDOFF}, {hex(W*0x2000)}")
        A(f"    s_add_u32 s{SEOFF}, s{SEOFF}, {W*64}")
        A(f"    s_and_b32 s{SEOFF}, s{SEOFF}, 0x1fff")
        A(f"    s_add_u32 s{SCNT}, s{SCNT}, 1")
        if isK and midwait and b == 1:
            A(f"    s_cmp_eq_u32 s{SCNT}, {2*BPM}")
            A(f"    s_cselect_b64 s[{SD}:{SD+1}], s[{SVB}:{SVB+1}], s[{SD}:{SD+1}]")
            A(f"    s_cselect_b64 s[{SP}:{SP+1}], s[{SFB}:{SFB+1}], s[{SP}:{SP+1}]")
            A(f"    s_cselect_b32 s{SDOFF}, 0, s{SDOFF}")
        if fb and not isK and b == 1:
            A(f"    s_sub_u32 s52, s{SCNT}, s{SWIN}")
            A(f"    s_cmp_lt_u32 s52, {wlen}")
            A(f"    s_cselect_b32 s{SG+2}, 128, 0")
            stub, back, chk = lab("rp"), lab("rb"), lab("rc")
            A(f"    s_cmp_eq_u32 s{SREP}, 0")
            A(f"    s_cbranch_scc1 {stub}")
            A(f"{back}:")
            dst, dbk = lab("dc"), lab("db")
            A(f"    s_cmp_eq_u32 s52, {wlen+2}")
            A(f"    s_cbranch_scc1 {dst}")
            A(f"{dbk}:")
            stubs.append([f"{dst}:                                      ; window consumed: lateness -> number of widened / narrowed groups",
                f"    v_readfirstlane_b32 s53, v{VPS}",
                f"    v_mov_b32 v{VPS}, 0",
                f"    s_add_u32 s{SPO}, s{SPO}, 4",
                f"    s_sub_i32 s53, s53, {s0}",
                f"    s_mul_i32 s54, s53, {gain}",
                f"    s_mul_i32 s{SCTL}, s53, {sgain}",
                f"    s_cmp_gt_i32 s53, 0",
                f"    s_cselect_b32 s{SCTL}, s54, s{SCTL}",
                f"    s_and_b32 s{SWIN}, s{SLIST}, 0xff",
                f"    s_cselect_b32 s{SWIN}, s{SWIN}, 0x10000",
                f"    s_lshr_b32 s{SLIST}, s{SLIST}, 8",
                f"    s_branch {dbk}"])
            stubs.append([f"{stub}:                                      ; representatives: count in, the median arriver publishes the mark",
                f"    s_cmp_eq_u32 s52, {mark+4}",
                f"    s_cbranch_scc1 {chk}",
                f"    s_cmp_lg_i32 s52, {am}",
                f"    s_cbranch_scc1 {back}",
                f"    v_mov_b32 v{VAT}, 1",
                f"    s_mov_b64 exec, 1",
                f"    buffer_atomic_add v{VAT}, off, s[{SH}:{SH+3}], s{SPO} offset:128 sc0 sc1",
                f"    s_mov_b64 exec, -1",
                f"    s_branch {back}",
                f"{chk}:",
                f"    v_readfirstlane_b32 s53, v{VAT}",
                f"    v_mov_b32 v{VONE}, 1",
                f"    s_cmp_lg_u32 s53, {med}",
                f"    s_cbranch_scc1 {back}",
                f"    s_mov_b64 exec, 1",
                f"    buffer_store_dword v{VONE}, off, s[{SH}:{SH+3}], s{SPO} sc1",
                f"    s_mov_b64 exec, -1",
                f"    s_branch {back}"])

    def perms(b, e):
        w, h = e >> 1, e & 1
        t = T[e & 1]
        sel = SSEL1 if h else SSEL0
        for q in range(4):
            lo_ = bufd(b, 2 * q) + w
            hi_ = bufd(b, 2 * q + 1) + w
            A(f"    v_perm_b32 v{t+q}, v{hi_}, v{lo_}, s{sel}")

    def mfma(b, e, isK):
        t = T[e & 1]
        a = ACC + 4 * e
        eb = bufe(b)
        if isK:
            A(f"    v_mfma_f32_16x16x32_bf16 v[{a}:{a+3}], v[{t}:{t+3}], v[{eb}:{eb+3}], v[{a}:{a+3}]")
        else:
            A(f"    v_mfma_f32_16x16x32_bf16 v[{a}:{a+3}], v[{eb}:{eb+3}], v[{t}:{t+3}], v[{a}:{a+3}]")

    def compute(b, isK):
        perms(b, 0)
        for e in range(8):
            if e < 7:
                perms(b, e + 1)
            else:
                A("    s_nop 1")
            mfma(b, e, isK)

    for b in range(NB):
        loads(b, True, None)
    A(f"    s_add_u32 s{SQ}, s4, s55")
    A(f"    s_addc_u32 s{SQ+1}, s5, 0")
    A(f"    s_mov_b32 s{SQ+2}, 0x4000")
    A(f"    s_mov_b32 s{SQ+3}, 0x20000")
    A(f"    s_lshl_b32 s53, s{SWAVE}, 13")
    A(f"    v_and_b32 v12, 63, v0")
    A(f"    v_lshlrev_b32 v{VPF}, 4, v12                  ; lane * 16")
    for j0 in range(0, 8, 4):
        A(f"    s_add_u32 s54, s53, {QBASE}")
        A("    s_mov_b32 m0, s54")
        A("    s_nop 0")
        for j in range(4):
            off = f" offset:{j*1024}" if j else ""
            A(f"    buffer_load_dwordx4 v{VPF}, s[{SQ}:{SQ+3}], s53 offen{off} nt lds")
        if j0 == 0:
            A(f"    s_add_u32 s53, s53, 0x1000")
    A(f"    s_lshr_b32 s{SPFO}, s2, 3")
    A(f"    s_lshl_b32 s{SPFO}, s{SPFO}, 1")
    A(f"    s_add_u32 s{SPFO}, s{SPFO}, s{SWAVE}")
    A(f"    s_lshl_b32 s{SPFO}, s{SPFO}, 11")
    A(f"    buffer_load_dwordx4 v[{Y}:{Y+3}], v{VPF}, s[{SP}:{SP+3}], s{SPFO} offen")
    A(f"    buffer_load_dwordx4 v[{Y+4}:{Y+7}], v{VPF}, s[{SP}:{SP+3}], s{SPFO} offen offset:1024")
    A(f"    s_add_u32 s{SVB}, s8, s3")
    A(f"    s_addc_u32 s{SVB+1}, s9, 0")
    A(f"    s_mov_b32 s{SFB}, s12")
    A(f"    s_mov_b32 s{SFB+1}, s13")
    A(f"    s_add_u32 s{SO}, s14, s55")
    A(f"    s_addc_u32 s{SO+1}, s15, 0")
    A(f"    s_mov_b32 s{SO+2}, 0x4000")
    A(f"    s_mov_b32 s{SO+3}, 0x20000")
    if warmv:
        A(f"    s_load_dword s53, s[{SVB}:{SVB+1}], 0")
        A(f"    s_load_dword s54, s[{SO}:{SO+1}], 0")
    if fb:
        A(f"    s_mov_b32 s{SG+2}, 0")
        A(f"    s_mov_b32 s{SG+3}, 0x20000")
        A(f"    s_mov_b32 s{SH}, s{SG}")
        A(f"    s_mov_b32 s{SH+1}, s{SG+1}")
        A(f"    s_mov_b32 s{SH+2}, 256")
        A(f"    s_mov_b32 s{SH+3}, 0x20000")
        A(f"    s_mov_b32 s{SWIN}, {rl[0]}")
        A(f"    s_mov_b32 s{SLIST}, {hex(sum(v << (8*i) for i, v in enumerate(rl[1:])))}")
        A(f"    s_mov_b32 s{SPO}, 0")
        A(f"    s_mov_b32 s{SCTL}, 0")
        A(f"    s_cmp_lt_u32 s2, 8")
        A(f"    s_cselect_b32 s{SREP}, s{SWAVE}, 1")
        A(f"    v_mov_b32 v{VPS}, 0")
        A(f"    v_mov_b32 v{VPL[0]}, 0")
        A(f"    v_mov_b32 v{VPL[1]}, 0")
        A(f"    v_lshlrev_b32 v{VPO}, 8, v12")
    if until and uabs:
        A("    s_not_b32 s53, s58")
        A(f"    v_mov_b32 v{VONE}, s53")
        A("    s_mov_b64 exec, 1")
        A(f"    buffer_atomic_umax v{VONE}, off, s[{SH}:{SH+3}], 0 offset:64 sc1")
        A("    s_mov_b64 exec, -1")
    A(f"    s_mov_b32 s{SSEL0}, 0x05040100")
    A(f"    s_mov_b32 s{SSEL1}, 0x07060302")
    A("    s_mov_b32 s60, 0x3db504f3                   ; 128^-0.5")
    A("    s_mov_b32 s61, 0xffff0000")
    A("    s_mov_b32 s62, 0x3fb8aa3b                   ; log2(e)")
    A(f"    v_lshl_add_u32 v{VLDS_W}, v8, 13, v{VPF}")
    A(f"    v_xor_b32 v{VLDS_R}, 0x2000, v{VLDS_W}")
    A(f"    v_lshlrev_b32 v{VLDS_Q}, 12, v8")
    A(f"    v_lshl_add_u32 v{VLDS_Q}, v9, 8, v{VLDS_Q}")
    A(f"    v_lshl_add_u32 v{VLDS_Q}, v10, 6, v{VLDS_Q}")
    A(f"    v_add_u32 v{VLDS_Q}, {QBASE}, v{VLDS_Q}")
    A(f"    v_lshlrev_b32 v{VOFF_O}, 12, v8")
    A(f"    v_lshl_add_u32 v{VOFF_O}, v10, 10, v{VOFF_O}")
    A(f"    v_lshl_add_u32 v{VOFF_O}, v9, 4, v{VOFF_O}")
    A(f"    v_mov_b32 v{P1}, 0")
    A(f"    v_mov_b32 v{P1+1}, 0")

    def zero_acc():
        if mov64:
            for i in range(0, 32, 2):
                A(f"    v_mov_b64 v[{ACC+i}:{ACC+i+1}], 0")
        else:
            for i in range(32):
                A(f"    v_mov_b32 v{ACC+i}, 0")

    NI = BPM // NB
    def midwait(isK, b):
        c = mid + (1 if fb and not isK else 0)
        def f():
            back = lab("cb")
            if lastfree and b == 1:
                A(f"    s_cmp_eq_u32 s{SIT}, {NI-1}")
                A(f"    s_cbranch_scc1 {back}")
            if fb and not isK:
                stub, sl = lab("cs"), lab("sl")
                A(f"    s_cmp_lg_u32 s{SCTL}, 0")
                A(f"    s_cbranch_scc1 {stub}")
                stubs.append([f"{stub}:",
                    f"    s_cmp_lt_i32 s{SCTL}, 0",
                    f"    s_cbranch_scc1 {sl}",
                    f"    s_sub_u32 s{SCTL}, s{SCTL}, 1",
                    f"    s_branch {back}",
                    f"{sl}:",
                    f"    s_add_u32 s{SCTL}, s{SCTL}, 1",
                    f"    s_waitcnt vmcnt({slowc+1})",
                    f"    s_branch {back}"])
            A(f"    s_waitcnt vmcnt({c})")
            A(f"{back}:")
        return f

    def flush_stubs():
        if stubs:
            after = lab("after")
            A(f"    s_branch {after}")
            for c in stubs:
                for l in c:
                    A(l)
            A(f"{after}:")
            stubs.clear()

    def loop(nm, isK):
        A(f"    s_mov_b32 s{SIT}, 0")
        A(f"L_{nm}:")
        for b in range(NB):
            A(f"    s_waitcnt vmcnt({9 if (isK or not fb) else 11})")
            compute(b, isK)
            if isK:
                loads(b, True, midwait(True, b))
            else:
                stub, back = lab("stub"), lab("back")
                A(f"    s_cmp_eq_u32 s{SCNT}, {4*BPM}")
                A(f"    s_cbranch_scc1 {stub if b == 0 else back}")
                loads(b, False, midwait(False, b))
                A(f"{back}:")
                if b == 0:
                    stubs.append([f"{stub}:", "    s_waitcnt vmcnt(0)", f"    s_branch {back}"])
        stamp(True)
        A(f"    s_add_u32 s{SIT}, s{SIT}, 1")
        A(f"    s_cmp_lt_u32 s{SIT}, {NI}")
        A(f"    s_cbranch_scc1 L_{nm}")
        flush_stubs()

    def exchange():
        A("    s_nop 7")
        for e in range(8):
            a = ACC + 4 * e
            A(f"    ds_write_b128 v{VLDS_W}, v[{a}:{a+3}] offset:{e*1024}")
        A("    s_waitcnt lgkmcnt(0)")
        A("    s_barrier")
        for e in range(8):
            A(f"    ds_read_b128 v[{Y+4*e}:{Y+4*e+3}], v{VLDS_R} offset:{e*1024}")

    def addp(extra=0):
        for e in range(8):
            a, t = ACC + 4 * e, Y + 4 * e
            A(f"    s_waitcnt lgkmcnt({7-e+extra})")
            A(f"    v_pk_add_f32 v[{a}:{a+1}], v[{a}:{a+1}], v[{t}:{t+1}]")
            A(f"    v_pk_add_f32 v[{a+2}:{a+3}], v[{a+2}:{a+3}], v[{t+2}:{t+3}]")

    def next_slot():
        A(f"    v_xor_b32 v{VLDS_W}, {SLOT}, v{VLDS_W}")
        A(f"    v_xor_b32 v{VLDS_R}, {SLOT}, v{VLDS_R}")

    A(f"    s_mov_b32 s{SMAT}, 0")
    A("L_kouter:")
    zero_acc()
    loop("kloop", True)
    exchange()
    for i in range(4):
        A(f"    ds_read_b128 v[{Q+4*i}:{Q+4*i+3}], v{VLDS_Q} offset:{16*i}")
    addp(4)
    for i in range(4):
        for p in range(4):
            A(f"    v_cvt_pk_bf16_f32 v{X+4*i+p}, v{ACC+4*(2*p)+i}, v{ACC+4*(2*p+1)+i}")
    S, U = T[0], T[1]
    A(f"    s_waitcnt lgkmcnt(0)")
    for i in range(4):
        c = "0" if i == 0 else f"v[{S}:{S+3}]"
        A(f"    v_mfma_f32_16x16x32_bf16 v[{S}:{S+3}], v[{X+4*i}:{X+4*i+3}], v[{Q+4*i}:{Q+4*i+3}], {c}")
    A("    s_nop 7")
    A(f"    v_cvt_pk_bf16_f32 v{U}, v{S}, v{S+1}")
    A(f"    v_cvt_pk_bf16_f32 v{U+1}, v{S+2}, v{S+3}")
    A(f"    v_lshlrev_b32 v{S}, 16, v{U}")
    A(f"    v_and_b32 v{S+1}, s61, v{U}")
    A(f"    v_lshlrev_b32 v{S+2}, 16, v{U+1}")
    A(f"    v_and_b32 v{S+3}, s61, v{U+1}")
    for i in range(4):
        A(f"    v_mul_f32 v{S+i}, s60, v{S+i}")
    A(f"    v_cvt_pk_bf16_f32 v{U}, v{S}, v{S+1}")
    A(f"    v_cvt_pk_bf16_f32 v{U+1}, v{S+2}, v{S+3}")
    A(f"    v_lshlrev_b32 v{S}, 16, v{U}")
    A(f"    v_and_b32 v{S+1}, s61, v{U}")
    A(f"    v_lshlrev_b32 v{S+2}, 16, v{U+1}")
    A(f"    v_and_b32 v{S+3}, s61, v{U+1}")
    M, M2 = U, U + 1
    A(f"    v_max_f32 v{M}, v{S}, v{S+1}")
    A(f"    v_max3_f32 v{M}, v{M}, v{S+2}, v{S+3}")
    def xreduce(op):
        A(f"    v_mov_b32 v{M2}, v{M}")
        A("    s_nop 1")
        A(f"    v_permlane16_swap_b32 v{M}, v{M2}")
        A(f"    {op} v{M}, v{M}, v{M2}")
        A(f"    v_mov_b32 v{M2}, v{M}")
        A("    s_nop 1")
        A(f"    v_permlane32_swap_b32 v{M}, v{M2}")
        A(f"    {op} v{M}, v{M}, v{M2}")
    xreduce("v_max_f32")
    for i in range(4):
        A(f"    v_sub_f32 v{S+i}, v{S+i}, v{M}")
    for i in range(4):
        A(f"    v_mul_f32 v{S+i}, s62, v{S+i}")
    for i in range(4):
        A(f"    v_exp_f32 v{S+i}, v{S+i}")
    A("    s_nop 0")
    A(f"    v_add_f32 v{M}, v{S}, v{S+1}")
    A(f"    v_add_f32 v{M2}, v{S+2}, v{S+3}")
    A(f"    v_add_f32 v{M}, v{M}, v{M2}")
    xreduce("v_add_f32")
    A(f"    v_rcp_f32 v{M}, v{M}")
    A("    s_nop 0")
    for i in range(4):
        A(f"    v_mul_f32 v{S+i}, v{S+i}, v{M}")
    A(f"    v_mov_b32 v{P0}, v{P1}")
    A(f"    v_mov_b32 v{P0+1}, v{P1+1}")
    A(f"    v_cvt_pk_bf16_f32 v{P1}, v{S}, v{S+1}")
    A(f"    v_cvt_pk_bf16_f32 v{P1+1}, v{S+2}, v{S+3}")
    next_slot()
    A(f"    s_cmp_lg_u32 s{SMAT}, 0")
    A("    s_cbranch_scc1 L_kdone")
    A(f"    s_mov_b32 s{SQ}, s{SFB}")
    A(f"    s_mov_b32 s{SQ+1}, s{SFB+1}")
    A(f"    s_mov_b32 s{SQ+2}, 0x20000")
    A(f"    buffer_load_dwordx4 v[{Y}:{Y+3}], v{VPF}, s[{SQ}:{SQ+3}], s{SPFO} offen")
    A(f"    buffer_load_dwordx4 v[{Y+4}:{Y+7}], v{VPF}, s[{SQ}:{SQ+3}], s{SPFO} offen offset:1024")
    A(f"    v_add_u32 v{VLDS_Q}, 0x2000, v{VLDS_Q}")
    A(f"    s_mov_b32 s{SMAT}, 1")
    A("    s_branch L_kouter")
    A("L_kdone:")
    A(f"    s_mov_b32 s{SMAT}, 0")
    if fb:
        A("    ; two (empty) polls behind the groups in flight make the V loop's wait counts exact from its first pass")
        poll(0)
        poll(1)
    A("L_vouter:")
    zero_acc()
    loop("vloop", False)
    A(f"    s_cmp_eq_u32 s{SMAT}, 0")
    A("    s_cbranch_scc1 L_noest")
    for i in range(4):
        r = Q + 4 * i
        A(f"    buffer_store_dwordx4 v[{r}:{r+3}], v{VOFF_O}, s[{SO}:{SO+3}], 0 offen offset:{256*i} nt")
    A("L_noest:")
    exchange()
    addp()
    for e in range(8):
        a = ACC + 4 * e
        A(f"    v_cvt_pk_bf16_f32 v{X+2*e}, v{a}, v{a+1}")
        A(f"    v_cvt_pk_bf16_f32 v{X+2*e+1}, v{a+2}, v{a+3}")
    A("    s_nop 1")
    for e in range(8):
        o = Y + 4 * e
        A(f"    v_mfma_f32_16x16x16_bf16 v[{o}:{o+3}], v[{P0}:{P0+1}], v[{X+2*e}:{X+2*e+1}], 0")
    A("    s_nop 7")
    A(f"    s_cmp_lg_u32 s{SMAT}, 0")
    A("    s_cbranch_scc1 L_vlast")
    for i in range(4):
        r = Q + 4 * i
        for p in range(4):
            A(f"    v_cvt_pk_bf16_f32 v{r+p}, v{Y+4*(2*p)+i}, v{Y+4*(2*p+1)+i}")
    A(f"    v_mov_b32 v{P0}, v{P1}")
    A(f"    v_mov_b32 v{P0+1}, v{P1+1}")
    next_slot()
    A(f"    s_mov_b32 s{SMAT}, 1")
    A("    s_branch L_vouter")
    A("L_vlast:")
    A(f"    s_movk_i32 s{SOOFF}, 0x2000")
    for i in range(4):
        r = ACC + 4 * i
        for p in range(4):
            A(f"    v_cvt_pk_bf16_f32 v{r+p}, v{Y+4*(2*p)+i}, v{Y+4*(2*p+1)+i}")
        A(f"    buffer_store_dwordx4 v[{r}:{r+3}], v{VOFF_O}, s[{SO}:{SO+3}], s{SOOFF} offen offset:{256*i} nt")
    if ts:
        stamp()
        A("    s_getreg_b32 s60, hwreg(HW_REG_XCC_ID)")
        A("    s_getreg_b32 s61, hwreg(HW_REG_HW_ID)")
        A(f"    v_writelane_b32 v{VTS}, s60, 62")
        A(f"    v_writelane_b32 v{VTS}, s61, 63")
        A(f"    s_mul_i32 s62, s2, {W*256}")
        A("    s_add_u32 s58, s58, s62")
        A("    s_addc_u32 s59, s59, 0")
        A("    v_lshlrev_b32 v120, 2, v0")
        A(f"    global_store_dword v120, v{VTS}, s[58:59]")
    if until:
        if uabs:
            A(f"    buffer_load_dword v{VONE}, off, s[{SH}:{SH+3}], 0 offset:64 sc0 sc1")
            A("    s_waitcnt vmcnt(0)")
            A(f"    v_readfirstlane_b32 s58, v{VONE}")
            A("    s_nop 3")
            A("    s_not_b32 s58, s58")
        A(f"    s_add_u32 s52, s58, {until*100}")
        A("L_until:")
        A("    s_memrealtime s[50:51]")
        A("    s_waitcnt lgkmcnt(0)")
        A("    s_sub_u32 s53, s50, s52")
        A("    s_cmp_lt_i32 s53, 0")
        A("    s_cbranch_scc1 L_until")
    A("L_end:")
    A("    s_endpgm")
    A('.section .rodata,"a"')
    A(".p2align 6")
    A(f".amdhsa_kernel {NAME}_kernel")
    A(f"  .amdhsa_next_free_vgpr {NV}")
    A("  .amdhsa_next_free_sgpr 72")
    A(f"  .amdhsa_accum_offset {min(256,(NV+3)//4*4)}")
    A("  .amdhsa_group_segment_fixed_size 0")
    A("  .amdhsa_kernarg_size 64")
    A("  .amdhsa_user_sgpr_count 2")
    A("  .amdhsa_user_sgpr_kernarg_segment_ptr 1")
    A("  .amdhsa_system_sgpr_workgroup_id_x 1")
    A("  .amdhsa_float_denorm_mode_32 3")
    A(".end_amdhsa_kernel")
    return "\n".join(L) + "\n"


if __name__ == "__main__":
    ap = argparse.ArgumentParser()
    for k, d in dict(mid=10, wlen=16, mark=4, med=3, s0=7, gain=10, sgain=4, slowc=8, ts=0, tsdiv=4, ldsx=98304, am=-12,
                     lastfree=1, mov64=1, warmv=0, until=0, uabs=0).items():
        ap.add_argument("--" + k, type=int, default=d)
    ap.add_argument('--rounds', default='144,208')
    ap.add_argument("-o", default="-")
    a = vars(ap.parse_args())
    o = a.pop("o")
    s = gen(**a)
    (sys.stdout if o == "-" else open(o, "w")).write(s)
```

```python
import sys, argparse

NAME = "standalone__low_rank_proj_linformer__sampling"
HEADER = open('cdna_kernels/' + NAME + '.s.ref').read().split('; @launch')[0]

DOC = """; ---------------------------------------------------------------------------------------------------------
; ---------------------------------------------------------------------------------------------------------
"""


def gen(mid=9, rounds='144,208', wlen=16, mark=4, med=3, s0=7, gain=10, sgain=4, slowc=7, ts=0, tsdiv=4, ldsx=98304,
        am=-12, lastfree=1, mov64=1, warmv=1, bias=0, bias2=0, midpos=3, bar=0):
    rl = [int(x) for x in rounds.split(',')] if rounds else []
    fb = 1 if rl else 0
    assert not fb or rl[0] + am >= 132
    W, NB = 2, 2
    L = []
    A = L.append
    BPM = 64
    SLOT = W * 8192
    QBASE = 2 * SLOT
    lds = max(QBASE + 16384, ldsx)
    A(HEADER + f"; @launch grid=(256,1,1) block=(128,1,1) lds={lds}")
    A(DOC.rstrip())
    A('.amdgcn_target "amdgcn-amd-amdhsa--gfx950"')
    A(".text")
    A(f".globl {NAME}_kernel")
    A(".p2align 8")
    A(f".type {NAME}_kernel,@function")
    A(f"{NAME}_kernel:")
    VOFF_D, VOFF_E, VLDS_Q, VOFF_O, VTS, VLDS_W, VLDS_R = 1, 2, 3, 4, 5, 6, 7
    ACC = 8
    T = [40, 44]
    P0, P1 = 48, 50
    VPL = [52, 53]
    VPS, VPO = 54, 55
    X = 56
    Q = 72
    Y = 88
    BUF0 = 120
    def bufd(b, i): return BUF0 + 36 * b + 4 * i
    def bufe(b): return BUF0 + 36 * b + 32
    NV = BUF0 + 36 * NB
    VAT, VPF, VONE = NV, NV + 1, NV + 2
    NV += 3
    SD, SP, SQ, SO, SG = 16, 20, 24, 28, 32
    SVB, SFB = 36, 38
    SSEL0, SSEL1, SIT, SDOFF, SEOFF, SWAVE, SMAT, SCNT, SOOFF = 40, 41, 42, 43, 44, 45, 46, 47, 49
    SCTL, SREP, STS = 56, 57, 63
    SWIN, SPO, SLIST, SPFO, SH = 64, 65, 66, 67, 68
    uid = [0]
    def lab(p):
        uid[0] += 1
        return f"L_{p}{uid[0]}"

    def stamp(inloop=False):
        if not ts:
            return
        lbl = lab("ts")
        if inloop and tsdiv > 1:
            A(f"    s_and_b32 s52, s{SIT}, {tsdiv-1}")
            A(f"    s_cmp_lg_u32 s52, {tsdiv-1}")
            A(f"    s_cbranch_scc1 {lbl}")
        A("    s_memrealtime s[50:51]")
        A(f"    s_mov_b32 m0, s{STS}")
        A("    s_waitcnt lgkmcnt(0)")
        A(f"    v_writelane_b32 v{VTS}, s50, m0")
        A(f"    s_add_u32 s{STS}, s{STS}, 1")
        A(f"{lbl}:")

    A("    s_cmp_ge_u32 s2, 256")
    A("    s_cbranch_scc1 L_end")
    if ts:
        A(f"    s_mov_b32 s{STS}, 0")
        A(f"    v_mov_b32 v{VTS}, 0")
        stamp()
    A("    s_load_dwordx8 s[4:11], s[0:1], 0           ; q, k, v, e_proj")
    A("    s_load_dwordx4 s[12:15], s[0:1], 32")
    A(f"    s_load_dwordx2 s[{SG}:{SG+1}], s[0:1], 48         ; debug")
    if ts:
        A("    s_load_dwordx2 s[58:59], s[0:1], 56")
    A("    v_lshrrev_b32 v8, 6, v0                     ; wave")
    A("    v_and_b32 v9, 15, v0                        ; lane & 15")
    A("    v_bfe_u32 v10, v0, 4, 2                     ; g = lane >> 4")
    A(f"    v_readfirstlane_b32 s{SWAVE}, v8")
    A(f"    v_lshlrev_b32 v{VOFF_D}, 13, v8")
    A(f"    v_lshl_add_u32 v{VOFF_D}, v10, 11, v{VOFF_D}")
    A(f"    v_lshl_add_u32 v{VOFF_D}, v9, 4, v{VOFF_D}")
    A(f"    v_lshlrev_b32 v{VOFF_E}, 13, v9")
    A(f"    v_lshl_add_u32 v{VOFF_E}, v10, 4, v{VOFF_E}")
    A(f"    v_lshl_add_u32 v{VOFF_E}, v8, 6, v{VOFF_E}")
    A("    s_lshl_b32 s3, s2, 21")
    A("    s_lshl_b32 s55, s2, 14")
    A(f"    s_mov_b32 s{SD+2}, 0x200000")
    A(f"    s_mov_b32 s{SD+3}, 0x20000")
    A(f"    s_mov_b32 s{SP+2}, 0x20000")
    A(f"    s_mov_b32 s{SP+3}, 0x20000")
    A(f"    s_mov_b32 s{SDOFF}, 0")
    A(f"    s_mov_b32 s{SEOFF}, 0")
    A(f"    s_mov_b32 s{SCNT}, 0")
    A("    s_waitcnt lgkmcnt(0)")
    A(f"    s_add_u32 s{SD}, s6, s3")
    A(f"    s_addc_u32 s{SD+1}, s7, 0")
    A(f"    s_mov_b32 s{SP}, s10")
    A(f"    s_mov_b32 s{SP+1}, s11")

    stubs = []
    def poll(b):
        A(f"    buffer_load_dword v{VPL[b]}, v{VPO}, s[{SG}:{SG+3}], s{SPO} offen sc1")

    def loads(b, isK, midwait):
        for i in range(8):
            r = bufd(b, i)
            off = f" offset:{i*256}" if i else ""
            if i == midpos and midwait:
                midwait()
            A(f"    buffer_load_dwordx4 v[{r}:{r+3}], v{VOFF_D}, s[{SD}:{SD+3}], s{SDOFF} offen{off} nt")
        A(f"    buffer_load_dwordx4 v[{bufe(b)}:{bufe(b)+3}], v{VOFF_E}, s[{SP}:{SP+3}], s{SEOFF} offen")
        if fb and not isK:
            A(f"    v_add_u32 v{VPS}, v{VPS}, v{VPL[b]}")
            poll(b)
        A(f"    s_add_u32 s{SDOFF}, s{SDOFF}, {hex(W*0x2000)}")
        A(f"    s_add_u32 s{SEOFF}, s{SEOFF}, {W*64}")
        A(f"    s_and_b32 s{SEOFF}, s{SEOFF}, 0x1fff")
        A(f"    s_add_u32 s{SCNT}, s{SCNT}, 1")
        if isK and midwait and b == 1:
            A(f"    s_cmp_eq_u32 s{SCNT}, {2*BPM}")
            A(f"    s_cselect_b64 s[{SD}:{SD+1}], s[{SVB}:{SVB+1}], s[{SD}:{SD+1}]")
            A(f"    s_cselect_b64 s[{SP}:{SP+1}], s[{SFB}:{SFB+1}], s[{SP}:{SP+1}]")
            A(f"    s_cselect_b32 s{SDOFF}, 0, s{SDOFF}")
        if fb and not isK and b == 1:
            A(f"    s_sub_u32 s52, s{SCNT}, s{SWIN}")
            A(f"    s_cmp_lt_u32 s52, {wlen}")
            A(f"    s_cselect_b32 s{SG+2}, 128, 0")
            stub, back, chk = lab("rp"), lab("rb"), lab("rc")
            A(f"    s_cmp_eq_u32 s{SREP}, 0")
            A(f"    s_cbranch_scc1 {stub}")
            A(f"{back}:")
            dst, dbk = lab("dc"), lab("db")
            A(f"    s_cmp_eq_u32 s52, {wlen+2}")
            A(f"    s_cbranch_scc1 {dst}")
            A(f"{dbk}:")
            stubs.append([f"{dst}:                                      ; window consumed: lateness -> number of widened / narrowed groups",
                f"    v_readfirstlane_b32 s53, v{VPS}",
                f"    v_mov_b32 v{VPS}, 0",
                f"    s_add_u32 s{SPO}, s{SPO}, 4",
                f"    s_sub_i32 s53, s53, {s0}",
                f"    s_mul_i32 s54, s53, {gain}",
                f"    s_mul_i32 s{SCTL}, s53, {sgain}",
                f"    s_cmp_gt_i32 s53, 0",
                f"    s_cselect_b32 s{SCTL}, s54, s{SCTL}"] + ([f"    s_add_i32 s{SCTL}, s{SCTL}, s48"] if bias2 else []) + [
                f"    s_and_b32 s{SWIN}, s{SLIST}, 0xff",
                f"    s_cselect_b32 s{SWIN}, s{SWIN}, 0x10000",
                f"    s_lshr_b32 s{SLIST}, s{SLIST}, 8",
                f"    s_branch {dbk}"])
            stubs.append([f"{stub}:                                      ; representatives: count in, the median arriver publishes the mark",
                f"    s_cmp_eq_u32 s52, {mark+4}",
                f"    s_cbranch_scc1 {chk}",
                f"    s_cmp_lg_i32 s52, {am}",
                f"    s_cbranch_scc1 {back}",
                f"    v_mov_b32 v{VAT}, 1",
                f"    s_mov_b64 exec, 1",
                f"    buffer_atomic_add v{VAT}, off, s[{SH}:{SH+3}], s{SPO} offset:128 sc0 sc1",
                f"    s_mov_b64 exec, -1",
                f"    s_branch {back}",
                f"{chk}:",
                f"    v_readfirstlane_b32 s53, v{VAT}",
                f"    v_mov_b32 v{VONE}, 1",
                f"    s_cmp_lg_u32 s53, {med}",
                f"    s_cbranch_scc1 {back}",
                f"    s_mov_b64 exec, 1",
                f"    buffer_store_dword v{VONE}, off, s[{SH}:{SH+3}], s{SPO} sc1",
                f"    s_mov_b64 exec, -1",
                f"    s_branch {back}"])

    def perms(b, e):
        w, h = e >> 1, e & 1
        t = T[e & 1]
        sel = SSEL1 if h else SSEL0
        for q in range(4):
            lo_ = bufd(b, 2 * q) + w
            hi_ = bufd(b, 2 * q + 1) + w
            A(f"    v_perm_b32 v{t+q}, v{hi_}, v{lo_}, s{sel}")

    def mfma(b, e, isK):
        t = T[e & 1]
        a = ACC + 4 * e
        eb = bufe(b)
        if isK:
            A(f"    v_mfma_f32_16x16x32_bf16 v[{a}:{a+3}], v[{t}:{t+3}], v[{eb}:{eb+3}], v[{a}:{a+3}]")
        else:
            A(f"    v_mfma_f32_16x16x32_bf16 v[{a}:{a+3}], v[{eb}:{eb+3}], v[{t}:{t+3}], v[{a}:{a+3}]")

    def compute(b, isK):
        perms(b, 0)
        for e in range(8):
            if e < 7:
                perms(b, e + 1)
            else:
                A("    s_nop 1")
            mfma(b, e, isK)

    for b in range(NB):
        loads(b, True, None)
    A(f"    s_add_u32 s{SQ}, s4, s55")
    A(f"    s_addc_u32 s{SQ+1}, s5, 0")
    A(f"    s_mov_b32 s{SQ+2}, 0x4000")
    A(f"    s_mov_b32 s{SQ+3}, 0x20000")
    A(f"    s_lshl_b32 s53, s{SWAVE}, 13")
    A(f"    v_and_b32 v12, 63, v0")
    A(f"    v_lshlrev_b32 v{VPF}, 4, v12                  ; lane * 16")
    for j0 in range(0, 8, 4):
        A(f"    s_add_u32 s54, s53, {QBASE}")
        A("    s_mov_b32 m0, s54")
        A("    s_nop 0")
        for j in range(4):
            off = f" offset:{j*1024}" if j else ""
            A(f"    buffer_load_dwordx4 v{VPF}, s[{SQ}:{SQ+3}], s53 offen{off} nt lds")
        if j0 == 0:
            A(f"    s_add_u32 s53, s53, 0x1000")
    A(f"    s_lshr_b32 s{SPFO}, s2, 3")
    A(f"    s_lshl_b32 s{SPFO}, s{SPFO}, 1")
    A(f"    s_add_u32 s{SPFO}, s{SPFO}, s{SWAVE}")
    A(f"    s_lshl_b32 s{SPFO}, s{SPFO}, 11")
    A(f"    buffer_load_dwordx4 v[{Y}:{Y+3}], v{VPF}, s[{SP}:{SP+3}], s{SPFO} offen")
    A(f"    buffer_load_dwordx4 v[{Y+4}:{Y+7}], v{VPF}, s[{SP}:{SP+3}], s{SPFO} offen offset:1024")
    A(f"    s_add_u32 s{SVB}, s8, s3")
    A(f"    s_addc_u32 s{SVB+1}, s9, 0")
    A(f"    s_mov_b32 s{SFB}, s12")
    A(f"    s_mov_b32 s{SFB+1}, s13")
    A(f"    s_add_u32 s{SO}, s14, s55")
    A(f"    s_addc_u32 s{SO+1}, s15, 0")
    A(f"    s_mov_b32 s{SO+2}, 0x4000")
    A(f"    s_mov_b32 s{SO+3}, 0x20000")
    if warmv:
        A(f"    s_load_dword s53, s[{SVB}:{SVB+1}], 0")
    if fb:
        A(f"    s_mov_b32 s{SG+2}, 0")
        A(f"    s_mov_b32 s{SG+3}, 0x20000")
        A(f"    s_mov_b32 s{SH}, s{SG}")
        A(f"    s_mov_b32 s{SH+1}, s{SG+1}")
        A(f"    s_mov_b32 s{SH+2}, 256")
        A(f"    s_mov_b32 s{SH+3}, 0x20000")
        A(f"    s_mov_b32 s{SWIN}, {rl[0]}")
        A(f"    s_mov_b32 s{SLIST}, {hex(sum(v << (8*i) for i, v in enumerate(rl[1:])))}")
        A(f"    s_mov_b32 s{SPO}, 0")
        if bias or bias2:
            A("    s_getreg_b32 s48, hwreg(HW_REG_XCC_ID)")
            A("    s_and_b32 s48, s48, 1")
            A(f"    s_cselect_b32 s{SCTL}, 0, {bias}")
            A(f"    s_cselect_b32 s48, 0, {bias2}")
        else:
            A(f"    s_mov_b32 s{SCTL}, 0")
        A(f"    s_cmp_lt_u32 s2, 8")
        A(f"    s_cselect_b32 s{SREP}, s{SWAVE}, 1")
        A(f"    v_mov_b32 v{VPS}, 0")
        A(f"    v_mov_b32 v{VPL[0]}, 0")
        A(f"    v_mov_b32 v{VPL[1]}, 0")
        A(f"    v_lshlrev_b32 v{VPO}, 8, v12")
    A(f"    s_mov_b32 s{SSEL0}, 0x05040100")
    A(f"    s_mov_b32 s{SSEL1}, 0x07060302")
    A("    s_mov_b32 s60, 0x3db504f3                   ; 128^-0.5")
    A("    s_mov_b32 s61, 0xffff0000")
    A("    s_mov_b32 s62, 0x3fb8aa3b                   ; log2(e)")
    A(f"    v_lshl_add_u32 v{VLDS_W}, v8, 13, v{VPF}")
    A(f"    v_xor_b32 v{VLDS_R}, 0x2000, v{VLDS_W}")
    A(f"    v_lshlrev_b32 v{VLDS_Q}, 12, v8")
    A(f"    v_lshl_add_u32 v{VLDS_Q}, v9, 8, v{VLDS_Q}")
    A(f"    v_lshl_add_u32 v{VLDS_Q}, v10, 6, v{VLDS_Q}")
    A(f"    v_add_u32 v{VLDS_Q}, {QBASE}, v{VLDS_Q}")
    A(f"    v_lshlrev_b32 v{VOFF_O}, 12, v8")
    A(f"    v_lshl_add_u32 v{VOFF_O}, v10, 10, v{VOFF_O}")
    A(f"    v_lshl_add_u32 v{VOFF_O}, v9, 4, v{VOFF_O}")
    A(f"    v_mov_b32 v{P1}, 0")
    A(f"    v_mov_b32 v{P1+1}, 0")

    def zero_acc():
        if mov64:
            for i in range(0, 32, 2):
                A(f"    v_mov_b64 v[{ACC+i}:{ACC+i+1}], 0")
        else:
            for i in range(32):
                A(f"    v_mov_b32 v{ACC+i}, 0")

    NI = BPM // NB
    def midwait(isK, b):
        c = mid + (1 if fb and not isK else 0)
        def f():
            back = lab("cb")
            if lastfree and b == 1:
                A(f"    s_cmp_eq_u32 s{SIT}, {NI-1}")
                A(f"    s_cbranch_scc1 {back}")
            if fb and not isK:
                stub, sl = lab("cs"), lab("sl")
                A(f"    s_cmp_lg_u32 s{SCTL}, 0")
                A(f"    s_cbranch_scc1 {stub}")
                stubs.append([f"{stub}:",
                    f"    s_cmp_lt_i32 s{SCTL}, 0",
                    f"    s_cbranch_scc1 {sl}",
                    f"    s_sub_u32 s{SCTL}, s{SCTL}, 1",
                    f"    s_branch {back}",
                    f"{sl}:",
                    f"    s_add_u32 s{SCTL}, s{SCTL}, 1",
                    f"    s_waitcnt vmcnt({slowc+1})",
                    f"    s_branch {back}"])
            A(f"    s_waitcnt vmcnt({c})")
            A(f"{back}:")
        return f

    def flush_stubs():
        if stubs:
            after = lab("after")
            A(f"    s_branch {after}")
            for c in stubs:
                for l in c:
                    A(l)
            A(f"{after}:")
            stubs.clear()

    def loop(nm, isK):
        A(f"    s_mov_b32 s{SIT}, 0")
        A(f"L_{nm}:")
        for b in range(NB):
            A(f"    s_waitcnt vmcnt({9 if (isK or not fb) else 11})")
            compute(b, isK)
            if isK:
                loads(b, True, midwait(True, b))
            else:
                stub, back = lab("stub"), lab("back")
                A(f"    s_cmp_eq_u32 s{SCNT}, {4*BPM}")
                A(f"    s_cbranch_scc1 {stub if b == 0 else back}")
                loads(b, False, midwait(False, b))
                A(f"{back}:")
                if b == 0:
                    stubs.append([f"{stub}:", "    s_waitcnt vmcnt(0)", f"    s_branch {back}"])
        stamp(True)
        A(f"    s_add_u32 s{SIT}, s{SIT}, 1")
        if bar:
            sk = lab("nb")
            if bar > 1:
                A(f"    s_and_b32 s52, s{SIT}, {bar-1}")
                A(f"    s_cbranch_scc1 {sk}")
            A("    s_barrier")
            A(f"{sk}:")
        A(f"    s_cmp_lt_u32 s{SIT}, {NI}")
        A(f"    s_cbranch_scc1 L_{nm}")
        flush_stubs()

    def exchange():
        A("    s_nop 7")
        for e in range(8):
            a = ACC + 4 * e
            A(f"    ds_write_b128 v{VLDS_W}, v[{a}:{a+3}] offset:{e*1024}")
        A("    s_waitcnt lgkmcnt(0)")
        A("    s_barrier")
        for e in range(8):
            A(f"    ds_read_b128 v[{Y+4*e}:{Y+4*e+3}], v{VLDS_R} offset:{e*1024}")

    def addp(extra=0):
        for e in range(8):
            a, t = ACC + 4 * e, Y + 4 * e
            A(f"    s_waitcnt lgkmcnt({7-e+extra})")
            A(f"    v_pk_add_f32 v[{a}:{a+1}], v[{a}:{a+1}], v[{t}:{t+1}]")
            A(f"    v_pk_add_f32 v[{a+2}:{a+3}], v[{a+2}:{a+3}], v[{t+2}:{t+3}]")

    def next_slot():
        A(f"    v_xor_b32 v{VLDS_W}, {SLOT}, v{VLDS_W}")
        A(f"    v_xor_b32 v{VLDS_R}, {SLOT}, v{VLDS_R}")

    A(f"    s_mov_b32 s{SMAT}, 0")
    A("L_kouter:")
    zero_acc()
    loop("kloop", True)
    exchange()
    for i in range(4):
        A(f"    ds_read_b128 v[{Q+4*i}:{Q+4*i+3}], v{VLDS_Q} offset:{16*i}")
    addp(4)
    for i in range(4):
        for p in range(4):
            A(f"    v_cvt_pk_bf16_f32 v{X+4*i+p}, v{ACC+4*(2*p)+i}, v{ACC+4*(2*p+1)+i}")
    S, U = T[0], T[1]
    A(f"    s_waitcnt lgkmcnt(0)")
    for i in range(4):
        c = "0" if i == 0 else f"v[{S}:{S+3}]"
        A(f"    v_mfma_f32_16x16x32_bf16 v[{S}:{S+3}], v[{X+4*i}:{X+4*i+3}], v[{Q+4*i}:{Q+4*i+3}], {c}")
    A("    s_nop 7")
    A(f"    v_cvt_pk_bf16_f32 v{U}, v{S}, v{S+1}")
    A(f"    v_cvt_pk_bf16_f32 v{U+1}, v{S+2}, v{S+3}")
    A(f"    v_lshlrev_b32 v{S}, 16, v{U}")
    A(f"    v_and_b32 v{S+1}, s61, v{U}")
    A(f"    v_lshlrev_b32 v{S+2}, 16, v{U+1}")
    A(f"    v_and_b32 v{S+3}, s61, v{U+1}")
    for i in range(4):
        A(f"    v_mul_f32 v{S+i}, s60, v{S+i}")
    A(f"    v_cvt_pk_bf16_f32 v{U}, v{S}, v{S+1}")
    A(f"    v_cvt_pk_bf16_f32 v{U+1}, v{S+2}, v{S+3}")
    A(f"    v_lshlrev_b32 v{S}, 16, v{U}")
    A(f"    v_and_b32 v{S+1}, s61, v{U}")
    A(f"    v_lshlrev_b32 v{S+2}, 16, v{U+1}")
    A(f"    v_and_b32 v{S+3}, s61, v{U+1}")
    M, M2 = U, U + 1
    A(f"    v_max_f32 v{M}, v{S}, v{S+1}")
    A(f"    v_max3_f32 v{M}, v{M}, v{S+2}, v{S+3}")
    def xreduce(op):
        A(f"    v_mov_b32 v{M2}, v{M}")
        A("    s_nop 1")
        A(f"    v_permlane16_swap_b32 v{M}, v{M2}")
        A(f"    {op} v{M}, v{M}, v{M2}")
        A(f"    v_mov_b32 v{M2}, v{M}")
        A("    s_nop 1")
        A(f"    v_permlane32_swap_b32 v{M}, v{M2}")
        A(f"    {op} v{M}, v{M}, v{M2}")
    xreduce("v_max_f32")
    for i in range(4):
        A(f"    v_sub_f32 v{S+i}, v{S+i}, v{M}")
    for i in range(4):
        A(f"    v_mul_f32 v{S+i}, s62, v{S+i}")
    for i in range(4):
        A(f"    v_exp_f32 v{S+i}, v{S+i}")
    A("    s_nop 0")
    A(f"    v_add_f32 v{M}, v{S}, v{S+1}")
    A(f"    v_add_f32 v{M2}, v{S+2}, v{S+3}")
    A(f"    v_add_f32 v{M}, v{M}, v{M2}")
    xreduce("v_add_f32")
    A(f"    v_rcp_f32 v{M}, v{M}")
    A("    s_nop 0")
    for i in range(4):
        A(f"    v_mul_f32 v{S+i}, v{S+i}, v{M}")
    A(f"    v_mov_b32 v{P0}, v{P1}")
    A(f"    v_mov_b32 v{P0+1}, v{P1+1}")
    A(f"    v_cvt_pk_bf16_f32 v{P1}, v{S}, v{S+1}")
    A(f"    v_cvt_pk_bf16_f32 v{P1+1}, v{S+2}, v{S+3}")
    next_slot()
    A(f"    s_cmp_lg_u32 s{SMAT}, 0")
    A("    s_cbranch_scc1 L_kdone")
    A(f"    s_mov_b32 s{SQ}, s{SFB}")
    A(f"    s_mov_b32 s{SQ+1}, s{SFB+1}")
    A(f"    s_mov_b32 s{SQ+2}, 0x20000")
    A(f"    buffer_load_dwordx4 v[{Y}:{Y+3}], v{VPF}, s[{SQ}:{SQ+3}], s{SPFO} offen")
    A(f"    buffer_load_dwordx4 v[{Y+4}:{Y+7}], v{VPF}, s[{SQ}:{SQ+3}], s{SPFO} offen offset:1024")
    A(f"    v_add_u32 v{VLDS_Q}, 0x2000, v{VLDS_Q}")
    A(f"    s_mov_b32 s{SMAT}, 1")
    A("    s_branch L_kouter")
    A("L_kdone:")
    A(f"    s_mov_b32 s{SMAT}, 0")
    if fb:
        A("    ; two (empty) polls behind the groups in flight make the V loop's wait counts exact from its first pass")
        poll(0)
        poll(1)
    A("L_vouter:")
    zero_acc()
    loop("vloop", False)
    A(f"    s_cmp_eq_u32 s{SMAT}, 0")
    A("    s_cbranch_scc1 L_noest")
    for i in range(4):
        r = Q + 4 * i
        A(f"    buffer_store_dwordx4 v[{r}:{r+3}], v{VOFF_O}, s[{SO}:{SO+3}], 0 offen offset:{256*i} nt")
    A("L_noest:")
    exchange()
    addp()
    for e in range(8):
        a = ACC + 4 * e
        A(f"    v_cvt_pk_bf16_f32 v{X+2*e}, v{a}, v{a+1}")
        A(f"    v_cvt_pk_bf16_f32 v{X+2*e+1}, v{a+2}, v{a+3}")
    A("    s_nop 1")
    for e in range(8):
        o = Y + 4 * e
        A(f"    v_mfma_f32_16x16x16_bf16 v[{o}:{o+3}], v[{P0}:{P0+1}], v[{X+2*e}:{X+2*e+1}], 0")
    A("    s_nop 7")
    A(f"    s_cmp_lg_u32 s{SMAT}, 0")
    A("    s_cbranch_scc1 L_vlast")
    for i in range(4):
        r = Q + 4 * i
        for p in range(4):
            A(f"    v_cvt_pk_bf16_f32 v{r+p}, v{Y+4*(2*p)+i}, v{Y+4*(2*p+1)+i}")
    A(f"    v_mov_b32 v{P0}, v{P1}")
    A(f"    v_mov_b32 v{P0+1}, v{P1+1}")
    next_slot()
    A(f"    s_mov_b32 s{SMAT}, 1")
    A("    s_branch L_vouter")
    A("L_vlast:")
    A(f"    s_movk_i32 s{SOOFF}, 0x2000")
    for i in range(4):
        r = ACC + 4 * i
        for p in range(4):
            A(f"    v_cvt_pk_bf16_f32 v{r+p}, v{Y+4*(2*p)+i}, v{Y+4*(2*p+1)+i}")
        A(f"    buffer_store_dwordx4 v[{r}:{r+3}], v{VOFF_O}, s[{SO}:{SO+3}], s{SOOFF} offen offset:{256*i} nt")
    if ts:
        stamp()
        A("    s_getreg_b32 s60, hwreg(HW_REG_XCC_ID)")
        A("    s_getreg_b32 s61, hwreg(HW_REG_HW_ID)")
        A(f"    v_writelane_b32 v{VTS}, s60, 62")
        A(f"    v_writelane_b32 v{VTS}, s61, 63")
        A(f"    s_mul_i32 s62, s2, {W*256}")
        A("    s_add_u32 s58, s58, s62")
        A("    s_addc_u32 s59, s59, 0")
        A("    v_lshlrev_b32 v120, 2, v0")
        A(f"    global_store_dword v120, v{VTS}, s[58:59]")
    A("L_end:")
    A("    s_endpgm")
    A('.section .rodata,"a"')
    A(".p2align 6")
    A(f".amdhsa_kernel {NAME}_kernel")
    A(f"  .amdhsa_next_free_vgpr {NV}")
    A("  .amdhsa_next_free_sgpr 72")
    A(f"  .amdhsa_accum_offset {min(256,(NV+3)//4*4)}")
    A("  .amdhsa_group_segment_fixed_size 0")
    A("  .amdhsa_kernarg_size 64")
    A("  .amdhsa_user_sgpr_count 2")
    A("  .amdhsa_user_sgpr_kernarg_segment_ptr 1")
    A("  .amdhsa_system_sgpr_workgroup_id_x 1")
    A("  .amdhsa_float_denorm_mode_32 3")
    A(".end_amdhsa_kernel")
    return "\n".join(L) + "\n"


if __name__ == "__main__":
    ap = argparse.ArgumentParser()
    for k, d in dict(mid=9, wlen=16, mark=4, med=3, s0=7, gain=10, sgain=4, slowc=7, ts=0, tsdiv=4, ldsx=98304, am=-12,
                     lastfree=1, mov64=1, warmv=1, bias=0, bias2=0, midpos=3, bar=0).items():
        ap.add_argument("--" + k, type=int, default=d)
    ap.add_argument('--rounds', default='144,208')
    ap.add_argument("-o", default="-")
    a = vars(ap.parse_args())
    o = a.pop("o")
    s = gen(**a)
    (sys.stdout if o == "-" else open(o, "w")).write(s)
```

```python
import sys, argparse

NAME = "standalone__low_rank_proj_linformer__sampling"
HEADER = open('cdna_kernels/' + NAME + '.s.ref').read().split('; @launch')[0]

DOC = """; ---------------------------------------------------------------------------------------------------------
; ---------------------------------------------------------------------------------------------------------
"""


def gen(mid=9, rounds='144,208', wlen=16, mark=4, med=3, s0=7, gain=10, sgain=4, slowc=7, ts=0, tsdiv=4, ldsx=98304,
        am=-12, lastfree=1, mov64=1, warmv=1, bias=0, bias2=0, midpos=3, bar=0, qfirst=0, align=0, idrot=0, sfl='nt', efl=''):
    rl = [int(x) for x in rounds.split(',')] if rounds else []
    fb = 1 if rl else 0
    assert not fb or rl[0] + am >= 132
    W, NB = 2, 2
    L = []
    A = L.append
    BPM = 64
    SLOT = W * 8192
    QBASE = 2 * SLOT
    lds = max(QBASE + 16384, ldsx)
    A(HEADER + f"; @launch grid=(256,1,1) block=(128,1,1) lds={lds}")
    A(DOC.rstrip())
    A('.amdgcn_target "amdgcn-amd-amdhsa--gfx950"')
    A(".text")
    A(f".globl {NAME}_kernel")
    A(".p2align 8")
    A(f".type {NAME}_kernel,@function")
    A(f"{NAME}_kernel:")
    VOFF_D, VOFF_E, VLDS_Q, VOFF_O, VTS, VLDS_W, VLDS_R = 1, 2, 3, 4, 5, 6, 7
    ACC = 8
    T = [40, 44]
    P0, P1 = 48, 50
    VPL = [52, 53]
    VPS, VPO = 54, 55
    X = 56
    Q = 72
    Y = 88
    BUF0 = 120
    def bufd(b, i): return BUF0 + 36 * b + 4 * i
    def bufe(b): return BUF0 + 36 * b + 32
    NV = BUF0 + 36 * NB
    VAT, VPF, VONE = NV, NV + 1, NV + 2
    NV += 3
    SD, SP, SQ, SO, SG = 16, 20, 24, 28, 32
    SVB, SFB = 36, 38
    SSEL0, SSEL1, SIT, SDOFF, SEOFF, SWAVE, SMAT, SCNT, SOOFF = 40, 41, 42, 43, 44, 45, 46, 47, 49
    SCTL, SREP, STS = 56, 57, 63
    SWIN, SPO, SLIST, SPFO, SH = 64, 65, 66, 67, 68
    uid = [0]
    def lab(p):
        uid[0] += 1
        return f"L_{p}{uid[0]}"

    def stamp(inloop=False):
        if not ts:
            return
        lbl = lab("ts")
        if inloop and tsdiv > 1:
            A(f"    s_and_b32 s52, s{SIT}, {tsdiv-1}")
            A(f"    s_cmp_lg_u32 s52, {tsdiv-1}")
            A(f"    s_cbranch_scc1 {lbl}")
        A("    s_memrealtime s[50:51]")
        A(f"    s_mov_b32 m0, s{STS}")
        A("    s_waitcnt lgkmcnt(0)")
        A(f"    v_writelane_b32 v{VTS}, s50, m0")
        A(f"    s_add_u32 s{STS}, s{STS}, 1")
        A(f"{lbl}:")

    A("    s_cmp_ge_u32 s2, 256")
    A("    s_cbranch_scc1 L_end")
    if ts:
        A(f"    s_mov_b32 s{STS}, 0")
        A(f"    v_mov_b32 v{VTS}, 0")
        stamp()
    A("    s_load_dwordx8 s[4:11], s[0:1], 0           ; q, k, v, e_proj")
    A("    s_load_dwordx4 s[12:15], s[0:1], 32")
    A(f"    s_load_dwordx2 s[{SG}:{SG+1}], s[0:1], 48         ; debug")
    if ts:
        A("    s_load_dwordx2 s[58:59], s[0:1], 56")
    A("    v_lshrrev_b32 v8, 6, v0                     ; wave")
    A("    v_and_b32 v9, 15, v0                        ; lane & 15")
    A("    v_bfe_u32 v10, v0, 4, 2                     ; g = lane >> 4")
    A(f"    v_readfirstlane_b32 s{SWAVE}, v8")
    A(f"    v_lshlrev_b32 v{VOFF_D}, 13, v8")
    A(f"    v_lshl_add_u32 v{VOFF_D}, v10, 11, v{VOFF_D}")
    A(f"    v_lshl_add_u32 v{VOFF_D}, v9, 4, v{VOFF_D}")
    A(f"    v_lshlrev_b32 v{VOFF_E}, 13, v9")
    A(f"    v_lshl_add_u32 v{VOFF_E}, v10, 4, v{VOFF_E}")
    A(f"    v_lshl_add_u32 v{VOFF_E}, v8, 6, v{VOFF_E}")
    if idrot:
        A(f"    s_lshl_b32 s3, s2, {idrot}")
        A(f"    s_lshr_b32 s55, s2, {8-idrot}")
        A("    s_or_b32 s3, s3, s55")
        A("    s_and_b32 s3, s3, 255")
        A("    s_lshl_b32 s55, s3, 14")
        A("    s_lshl_b32 s3, s3, 21")
    else:
        A("    s_lshl_b32 s3, s2, 21")
        A("    s_lshl_b32 s55, s2, 14")
    A(f"    s_mov_b32 s{SD+2}, 0x200000")
    A(f"    s_mov_b32 s{SD+3}, 0x20000")
    A(f"    s_mov_b32 s{SP+2}, 0x20000")
    A(f"    s_mov_b32 s{SP+3}, 0x20000")
    A(f"    s_mov_b32 s{SDOFF}, 0")
    A(f"    s_mov_b32 s{SEOFF}, 0")
    A(f"    s_mov_b32 s{SCNT}, 0")
    A("    s_waitcnt lgkmcnt(0)")
    A(f"    s_add_u32 s{SD}, s6, s3")
    A(f"    s_addc_u32 s{SD+1}, s7, 0")
    A(f"    s_mov_b32 s{SP}, s10")
    A(f"    s_mov_b32 s{SP+1}, s11")

    stubs = []
    def poll(b):
        A(f"    buffer_load_dword v{VPL[b]}, v{VPO}, s[{SG}:{SG+3}], s{SPO} offen sc1")

    def loads(b, isK, midwait):
        for i in range(8):
            r = bufd(b, i)
            off = f" offset:{i*256}" if i else ""
            if i == midpos and midwait:
                midwait()
            A(f"    buffer_load_dwordx4 v[{r}:{r+3}], v{VOFF_D}, s[{SD}:{SD+3}], s{SDOFF} offen{off} {sfl.replace('_',' ')}")
        A(f"    buffer_load_dwordx4 v[{bufe(b)}:{bufe(b)+3}], v{VOFF_E}, s[{SP}:{SP+3}], s{SEOFF} offen{(' '+efl.replace('_',' ')) if efl else ''}")
        if fb and not isK:
            A(f"    v_add_u32 v{VPS}, v{VPS}, v{VPL[b]}")
            poll(b)
        A(f"    s_add_u32 s{SDOFF}, s{SDOFF}, {hex(W*0x2000)}")
        A(f"    s_add_u32 s{SEOFF}, s{SEOFF}, {W*64}")
        A(f"    s_and_b32 s{SEOFF}, s{SEOFF}, 0x1fff")
        A(f"    s_add_u32 s{SCNT}, s{SCNT}, 1")
        if isK and midwait and b == 1:
            A(f"    s_cmp_eq_u32 s{SCNT}, {2*BPM}")
            A(f"    s_cselect_b64 s[{SD}:{SD+1}], s[{SVB}:{SVB+1}], s[{SD}:{SD+1}]")
            A(f"    s_cselect_b64 s[{SP}:{SP+1}], s[{SFB}:{SFB+1}], s[{SP}:{SP+1}]")
            A(f"    s_cselect_b32 s{SDOFF}, 0, s{SDOFF}")
        if fb and not isK and b == 1:
            A(f"    s_sub_u32 s52, s{SCNT}, s{SWIN}")
            A(f"    s_cmp_lt_u32 s52, {wlen}")
            A(f"    s_cselect_b32 s{SG+2}, 128, 0")
            stub, back, chk = lab("rp"), lab("rb"), lab("rc")
            A(f"    s_cmp_eq_u32 s{SREP}, 0")
            A(f"    s_cbranch_scc1 {stub}")
            A(f"{back}:")
            dst, dbk = lab("dc"), lab("db")
            A(f"    s_cmp_eq_u32 s52, {wlen+2}")
            A(f"    s_cbranch_scc1 {dst}")
            A(f"{dbk}:")
            stubs.append([f"{dst}:                                      ; window consumed: lateness -> number of widened / narrowed groups",
                f"    v_readfirstlane_b32 s53, v{VPS}",
                f"    v_mov_b32 v{VPS}, 0",
                f"    s_add_u32 s{SPO}, s{SPO}, 4",
                f"    s_sub_i32 s53, s53, {s0}",
                f"    s_mul_i32 s54, s53, {gain}",
                f"    s_mul_i32 s{SCTL}, s53, {sgain}",
                f"    s_cmp_gt_i32 s53, 0",
                f"    s_cselect_b32 s{SCTL}, s54, s{SCTL}"] + ([f"    s_add_i32 s{SCTL}, s{SCTL}, s48"] if bias2 else []) + [
                f"    s_and_b32 s{SWIN}, s{SLIST}, 0xff",
                f"    s_cselect_b32 s{SWIN}, s{SWIN}, 0x10000",
                f"    s_lshr_b32 s{SLIST}, s{SLIST}, 8",
                f"    s_branch {dbk}"])
            stubs.append([f"{stub}:                                      ; representatives: count in, the median arriver publishes the mark",
                f"    s_cmp_eq_u32 s52, {mark+4}",
                f"    s_cbranch_scc1 {chk}",
                f"    s_cmp_lg_i32 s52, {am}",
                f"    s_cbranch_scc1 {back}",
                f"    v_mov_b32 v{VAT}, 1",
                f"    s_mov_b64 exec, 1",
                f"    buffer_atomic_add v{VAT}, off, s[{SH}:{SH+3}], s{SPO} offset:128 sc0 sc1",
                f"    s_mov_b64 exec, -1",
                f"    s_branch {back}",
                f"{chk}:",
                f"    v_readfirstlane_b32 s53, v{VAT}",
                f"    v_mov_b32 v{VONE}, 1",
                f"    s_cmp_lg_u32 s53, {med}",
                f"    s_cbranch_scc1 {back}",
                f"    s_mov_b64 exec, 1",
                f"    buffer_store_dword v{VONE}, off, s[{SH}:{SH+3}], s{SPO} sc1",
                f"    s_mov_b64 exec, -1",
                f"    s_branch {back}"])

    def perms(b, e):
        w, h = e >> 1, e & 1
        t = T[e & 1]
        sel = SSEL1 if h else SSEL0
        for q in range(4):
            lo_ = bufd(b, 2 * q) + w
            hi_ = bufd(b, 2 * q + 1) + w
            A(f"    v_perm_b32 v{t+q}, v{hi_}, v{lo_}, s{sel}")

    def mfma(b, e, isK):
        t = T[e & 1]
        a = ACC + 4 * e
        eb = bufe(b)
        if isK:
            A(f"    v_mfma_f32_16x16x32_bf16 v[{a}:{a+3}], v[{t}:{t+3}], v[{eb}:{eb+3}], v[{a}:{a+3}]")
        else:
            A(f"    v_mfma_f32_16x16x32_bf16 v[{a}:{a+3}], v[{eb}:{eb+3}], v[{t}:{t+3}], v[{a}:{a+3}]")

    def compute(b, isK):
        perms(b, 0)
        for e in range(8):
            if e < 7:
                perms(b, e + 1)
            else:
                A("    s_nop 1")
            mfma(b, e, isK)

    for b in range(NB - qfirst):
        loads(b, True, None)
    A(f"    s_add_u32 s{SQ}, s4, s55")
    A(f"    s_addc_u32 s{SQ+1}, s5, 0")
    A(f"    s_mov_b32 s{SQ+2}, 0x4000")
    A(f"    s_mov_b32 s{SQ+3}, 0x20000")
    A(f"    s_lshl_b32 s53, s{SWAVE}, 13")
    A(f"    v_and_b32 v12, 63, v0")
    A(f"    v_lshlrev_b32 v{VPF}, 4, v12                  ; lane * 16")
    for j0 in range(0, 8, 4):
        A(f"    s_add_u32 s54, s53, {QBASE}")
        A("    s_mov_b32 m0, s54")
        A("    s_nop 0")
        for j in range(4):
            off = f" offset:{j*1024}" if j else ""
            A(f"    buffer_load_dwordx4 v{VPF}, s[{SQ}:{SQ+3}], s53 offen{off} nt lds")
        if j0 == 0:
            A(f"    s_add_u32 s53, s53, 0x1000")
    A(f"    s_lshr_b32 s{SPFO}, s2, 3")
    A(f"    s_lshl_b32 s{SPFO}, s{SPFO}, 1")
    A(f"    s_add_u32 s{SPFO}, s{SPFO}, s{SWAVE}")
    A(f"    s_lshl_b32 s{SPFO}, s{SPFO}, 11")
    A(f"    buffer_load_dwordx4 v[{Y}:{Y+3}], v{VPF}, s[{SP}:{SP+3}], s{SPFO} offen")
    A(f"    buffer_load_dwordx4 v[{Y+4}:{Y+7}], v{VPF}, s[{SP}:{SP+3}], s{SPFO} offen offset:1024")
    for b in range(NB - qfirst, NB):
        loads(b, True, None)
    A(f"    s_add_u32 s{SVB}, s8, s3")
    A(f"    s_addc_u32 s{SVB+1}, s9, 0")
    A(f"    s_mov_b32 s{SFB}, s12")
    A(f"    s_mov_b32 s{SFB+1}, s13")
    A(f"    s_add_u32 s{SO}, s14, s55")
    A(f"    s_addc_u32 s{SO+1}, s15, 0")
    A(f"    s_mov_b32 s{SO+2}, 0x4000")
    A(f"    s_mov_b32 s{SO+3}, 0x20000")
    if warmv:
        A(f"    s_load_dword s53, s[{SVB}:{SVB+1}], 0")
    if fb:
        A(f"    s_mov_b32 s{SG+2}, 0")
        A(f"    s_mov_b32 s{SG+3}, 0x20000")
        A(f"    s_mov_b32 s{SH}, s{SG}")
        A(f"    s_mov_b32 s{SH+1}, s{SG+1}")
        A(f"    s_mov_b32 s{SH+2}, 256")
        A(f"    s_mov_b32 s{SH+3}, 0x20000")
        A(f"    s_mov_b32 s{SWIN}, {rl[0]}")
        A(f"    s_mov_b32 s{SLIST}, {hex(sum(v << (8*i) for i, v in enumerate(rl[1:])))}")
        A(f"    s_mov_b32 s{SPO}, 0")
        if bias or bias2:
            A("    s_getreg_b32 s48, hwreg(HW_REG_XCC_ID)")
            A("    s_and_b32 s48, s48, 1")
            A(f"    s_cselect_b32 s{SCTL}, 0, {bias}")
            A(f"    s_cselect_b32 s48, 0, {bias2}")
        else:
            A(f"    s_mov_b32 s{SCTL}, 0")
        A(f"    s_cmp_lt_u32 s2, 8")
        A(f"    s_cselect_b32 s{SREP}, s{SWAVE}, 1")
        A(f"    v_mov_b32 v{VPS}, 0")
        A(f"    v_mov_b32 v{VPL[0]}, 0")
        A(f"    v_mov_b32 v{VPL[1]}, 0")
        A(f"    v_lshlrev_b32 v{VPO}, 8, v12")
    A(f"    s_mov_b32 s{SSEL0}, 0x05040100")
    A(f"    s_mov_b32 s{SSEL1}, 0x07060302")
    A("    s_mov_b32 s60, 0x3db504f3                   ; 128^-0.5")
    A("    s_mov_b32 s61, 0xffff0000")
    A("    s_mov_b32 s62, 0x3fb8aa3b                   ; log2(e)")
    A(f"    v_lshl_add_u32 v{VLDS_W}, v8, 13, v{VPF}")
    A(f"    v_xor_b32 v{VLDS_R}, 0x2000, v{VLDS_W}")
    A(f"    v_lshlrev_b32 v{VLDS_Q}, 12, v8")
    A(f"    v_lshl_add_u32 v{VLDS_Q}, v9, 8, v{VLDS_Q}")
    A(f"    v_lshl_add_u32 v{VLDS_Q}, v10, 6, v{VLDS_Q}")
    A(f"    v_add_u32 v{VLDS_Q}, {QBASE}, v{VLDS_Q}")
    A(f"    v_lshlrev_b32 v{VOFF_O}, 12, v8")
    A(f"    v_lshl_add_u32 v{VOFF_O}, v10, 10, v{VOFF_O}")
    A(f"    v_lshl_add_u32 v{VOFF_O}, v9, 4, v{VOFF_O}")
    A(f"    v_mov_b32 v{P1}, 0")
    A(f"    v_mov_b32 v{P1+1}, 0")

    def zero_acc():
        if mov64:
            for i in range(0, 32, 2):
                A(f"    v_mov_b64 v[{ACC+i}:{ACC+i+1}], 0")
        else:
            for i in range(32):
                A(f"    v_mov_b32 v{ACC+i}, 0")

    NI = BPM // NB
    def midwait(isK, b):
        c = mid + (1 if fb and not isK else 0)
        def f():
            back = lab("cb")
            if lastfree and b == 1:
                A(f"    s_cmp_eq_u32 s{SIT}, {NI-1}")
                A(f"    s_cbranch_scc1 {back}")
            if fb and not isK:
                stub, sl = lab("cs"), lab("sl")
                A(f"    s_cmp_lg_u32 s{SCTL}, 0")
                A(f"    s_cbranch_scc1 {stub}")
                stubs.append([f"{stub}:",
                    f"    s_cmp_lt_i32 s{SCTL}, 0",
                    f"    s_cbranch_scc1 {sl}",
                    f"    s_sub_u32 s{SCTL}, s{SCTL}, 1",
                    f"    s_branch {back}",
                    f"{sl}:",
                    f"    s_add_u32 s{SCTL}, s{SCTL}, 1",
                    f"    s_waitcnt vmcnt({slowc+1})",
                    f"    s_branch {back}"])
            A(f"    s_waitcnt vmcnt({c})")
            A(f"{back}:")
        return f

    def flush_stubs():
        if stubs:
            after = lab("after")
            A(f"    s_branch {after}")
            for c in stubs:
                for l in c:
                    A(l)
            A(f"{after}:")
            stubs.clear()

    def loop(nm, isK):
        A(f"    s_mov_b32 s{SIT}, 0")
        if align:
            A(f"    .p2align {align}")
        A(f"L_{nm}:")
        for b in range(NB):
            A(f"    s_waitcnt vmcnt({9 if (isK or not fb) else 11})")
            compute(b, isK)
            if isK:
                loads(b, True, midwait(True, b))
            else:
                stub, back = lab("stub"), lab("back")
                A(f"    s_cmp_eq_u32 s{SCNT}, {4*BPM}")
                A(f"    s_cbranch_scc1 {stub if b == 0 else back}")
                loads(b, False, midwait(False, b))
                A(f"{back}:")
                if b == 0:
                    stubs.append([f"{stub}:", "    s_waitcnt vmcnt(0)", f"    s_branch {back}"])
        stamp(True)
        A(f"    s_add_u32 s{SIT}, s{SIT}, 1")
        if bar:
            sk = lab("nb")
            if bar > 1:
                A(f"    s_and_b32 s52, s{SIT}, {bar-1}")
                A(f"    s_cbranch_scc1 {sk}")
            A("    s_barrier")
            A(f"{sk}:")
        A(f"    s_cmp_lt_u32 s{SIT}, {NI}")
        A(f"    s_cbranch_scc1 L_{nm}")
        flush_stubs()

    def exchange():
        A("    s_nop 7")
        for e in range(8):
            a = ACC + 4 * e
            A(f"    ds_write_b128 v{VLDS_W}, v[{a}:{a+3}] offset:{e*1024}")
        A("    s_waitcnt lgkmcnt(0)")
        A("    s_barrier")
        for e in range(8):
            A(f"    ds_read_b128 v[{Y+4*e}:{Y+4*e+3}], v{VLDS_R} offset:{e*1024}")

    def addp(extra=0):
        for e in range(8):
            a, t = ACC + 4 * e, Y + 4 * e
            A(f"    s_waitcnt lgkmcnt({7-e+extra})")
            A(f"    v_pk_add_f32 v[{a}:{a+1}], v[{a}:{a+1}], v[{t}:{t+1}]")
            A(f"    v_pk_add_f32 v[{a+2}:{a+3}], v[{a+2}:{a+3}], v[{t+2}:{t+3}]")

    def next_slot():
        A(f"    v_xor_b32 v{VLDS_W}, {SLOT}, v{VLDS_W}")
        A(f"    v_xor_b32 v{VLDS_R}, {SLOT}, v{VLDS_R}")

    A(f"    s_mov_b32 s{SMAT}, 0")
    A("L_kouter:")
    zero_acc()
    loop("kloop", True)
    exchange()
    for i in range(4):
        A(f"    ds_read_b128 v[{Q+4*i}:{Q+4*i+3}], v{VLDS_Q} offset:{16*i}")
    addp(4)
    for i in range(4):
        for p in range(4):
            A(f"    v_cvt_pk_bf16_f32 v{X+4*i+p}, v{ACC+4*(2*p)+i}, v{ACC+4*(2*p+1)+i}")
    S, U = T[0], T[1]
    A(f"    s_waitcnt lgkmcnt(0)")
    for i in range(4):
        c = "0" if i == 0 else f"v[{S}:{S+3}]"
        A(f"    v_mfma_f32_16x16x32_bf16 v[{S}:{S+3}], v[{X+4*i}:{X+4*i+3}], v[{Q+4*i}:{Q+4*i+3}], {c}")
    A("    s_nop 7")
    A(f"    v_cvt_pk_bf16_f32 v{U}, v{S}, v{S+1}")
    A(f"    v_cvt_pk_bf16_f32 v{U+1}, v{S+2}, v{S+3}")
    A(f"    v_lshlrev_b32 v{S}, 16, v{U}")
    A(f"    v_and_b32 v{S+1}, s61, v{U}")
    A(f"    v_lshlrev_b32 v{S+2}, 16, v{U+1}")
    A(f"    v_and_b32 v{S+3}, s61, v{U+1}")
    for i in range(4):
        A(f"    v_mul_f32 v{S+i}, s60, v{S+i}")
    A(f"    v_cvt_pk_bf16_f32 v{U}, v{S}, v{S+1}")
    A(f"    v_cvt_pk_bf16_f32 v{U+1}, v{S+2}, v{S+3}")
    A(f"    v_lshlrev_b32 v{S}, 16, v{U}")
    A(f"    v_and_b32 v{S+1}, s61, v{U}")
    A(f"    v_lshlrev_b32 v{S+2}, 16, v{U+1}")
    A(f"    v_and_b32 v{S+3}, s61, v{U+1}")
    M, M2 = U, U + 1
    A(f"    v_max_f32 v{M}, v{S}, v{S+1}")
    A(f"    v_max3_f32 v{M}, v{M}, v{S+2}, v{S+3}")
    def xreduce(op):
        A(f"    v_mov_b32 v{M2}, v{M}")
        A("    s_nop 1")
        A(f"    v_permlane16_swap_b32 v{M}, v{M2}")
        A(f"    {op} v{M}, v{M}, v{M2}")
        A(f"    v_mov_b32 v{M2}, v{M}")
        A("    s_nop 1")
        A(f"    v_permlane32_swap_b32 v{M}, v{M2}")
        A(f"    {op} v{M}, v{M}, v{M2}")
    xreduce("v_max_f32")
    for i in range(4):
        A(f"    v_sub_f32 v{S+i}, v{S+i}, v{M}")
    for i in range(4):
        A(f"    v_mul_f32 v{S+i}, s62, v{S+i}")
    for i in range(4):
        A(f"    v_exp_f32 v{S+i}, v{S+i}")
    A("    s_nop 0")
    A(f"    v_add_f32 v{M}, v{S}, v{S+1}")
    A(f"    v_add_f32 v{M2}, v{S+2}, v{S+3}")
    A(f"    v_add_f32 v{M}, v{M}, v{M2}")
    xreduce("v_add_f32")
    A(f"    v_rcp_f32 v{M}, v{M}")
    A("    s_nop 0")
    for i in range(4):
        A(f"    v_mul_f32 v{S+i}, v{S+i}, v{M}")
    A(f"    v_mov_b32 v{P0}, v{P1}")
    A(f"    v_mov_b32 v{P0+1}, v{P1+1}")
    A(f"    v_cvt_pk_bf16_f32 v{P1}, v{S}, v{S+1}")
    A(f"    v_cvt_pk_bf16_f32 v{P1+1}, v{S+2}, v{S+3}")
    next_slot()
    A(f"    s_cmp_lg_u32 s{SMAT}, 0")
    A("    s_cbranch_scc1 L_kdone")
    A(f"    s_mov_b32 s{SQ}, s{SFB}")
    A(f"    s_mov_b32 s{SQ+1}, s{SFB+1}")
    A(f"    s_mov_b32 s{SQ+2}, 0x20000")
    A(f"    buffer_load_dwordx4 v[{Y}:{Y+3}], v{VPF}, s[{SQ}:{SQ+3}], s{SPFO} offen")
    A(f"    buffer_load_dwordx4 v[{Y+4}:{Y+7}], v{VPF}, s[{SQ}:{SQ+3}], s{SPFO} offen offset:1024")
    A(f"    v_add_u32 v{VLDS_Q}, 0x2000, v{VLDS_Q}")
    A(f"    s_mov_b32 s{SMAT}, 1")
    A("    s_branch L_kouter")
    A("L_kdone:")
    A(f"    s_mov_b32 s{SMAT}, 0")
    if fb:
        A("    ; two (empty) polls behind the groups in flight make the V loop's wait counts exact from its first pass")
        poll(0)
        poll(1)
    A("L_vouter:")
    zero_acc()
    loop("vloop", False)
    A(f"    s_cmp_eq_u32 s{SMAT}, 0")
    A("    s_cbranch_scc1 L_noest")
    for i in range(4):
        r = Q + 4 * i
        A(f"    buffer_store_dwordx4 v[{r}:{r+3}], v{VOFF_O}, s[{SO}:{SO+3}], 0 offen offset:{256*i} nt")
    A("L_noest:")
    exchange()
    addp()
    for e in range(8):
        a = ACC + 4 * e
        A(f"    v_cvt_pk_bf16_f32 v{X+2*e}, v{a}, v{a+1}")
        A(f"    v_cvt_pk_bf16_f32 v{X+2*e+1}, v{a+2}, v{a+3}")
    A("    s_nop 1")
    for e in range(8):
        o = Y + 4 * e
        A(f"    v_mfma_f32_16x16x16_bf16 v[{o}:{o+3}], v[{P0}:{P0+1}], v[{X+2*e}:{X+2*e+1}], 0")
    A("    s_nop 7")
    A(f"    s_cmp_lg_u32 s{SMAT}, 0")
    A("    s_cbranch_scc1 L_vlast")
    for i in range(4):
        r = Q + 4 * i
        for p in range(4):
            A(f"    v_cvt_pk_bf16_f32 v{r+p}, v{Y+4*(2*p)+i}, v{Y+4*(2*p+1)+i}")
    A(f"    v_mov_b32 v{P0}, v{P1}")
    A(f"    v_mov_b32 v{P0+1}, v{P1+1}")
    next_slot()
    A(f"    s_mov_b32 s{SMAT}, 1")
    A("    s_branch L_vouter")
    A("L_vlast:")
    A(f"    s_movk_i32 s{SOOFF}, 0x2000")
    for i in range(4):
        r = ACC + 4 * i
        for p in range(4):
            A(f"    v_cvt_pk_bf16_f32 v{r+p}, v{Y+4*(2*p)+i}, v{Y+4*(2*p+1)+i}")
        A(f"    buffer_store_dwordx4 v[{r}:{r+3}], v{VOFF_O}, s[{SO}:{SO+3}], s{SOOFF} offen offset:{256*i} nt")
    if ts:
        stamp()
        A("    s_getreg_b32 s60, hwreg(HW_REG_XCC_ID)")
        A("    s_getreg_b32 s61, hwreg(HW_REG_HW_ID)")
        A(f"    v_writelane_b32 v{VTS}, s60, 62")
        A(f"    v_writelane_b32 v{VTS}, s61, 63")
        A(f"    s_mul_i32 s62, s2, {W*256}")
        A("    s_add_u32 s58, s58, s62")
        A("    s_addc_u32 s59, s59, 0")
        A("    v_lshlrev_b32 v120, 2, v0")
        A(f"    global_store_dword v120, v{VTS}, s[58:59]")
    A("L_end:")
    A("    s_endpgm")
    A('.section .rodata,"a"')
    A(".p2align 6")
    A(f".amdhsa_kernel {NAME}_kernel")
    A(f"  .amdhsa_next_free_vgpr {NV}")
    A("  .amdhsa_next_free_sgpr 72")
    A(f"  .amdhsa_accum_offset {min(256,(NV+3)//4*4)}")
    A("  .amdhsa_group_segment_fixed_size 0")
    A("  .amdhsa_kernarg_size 64")
    A("  .amdhsa_user_sgpr_count 2")
    A("  .amdhsa_user_sgpr_kernarg_segment_ptr 1")
    A("  .amdhsa_system_sgpr_workgroup_id_x 1")
    A("  .amdhsa_float_denorm_mode_32 3")
    A(".end_amdhsa_kernel")
    return "\n".join(L) + "\n"


if __name__ == "__main__":
    ap = argparse.ArgumentParser()
    for k, d in dict(mid=9, wlen=16, mark=4, med=3, s0=7, gain=10, sgain=4, slowc=7, ts=0, tsdiv=4, ldsx=98304, am=-12,
                     lastfree=1, mov64=1, warmv=1, bias=0, bias2=0, midpos=3, bar=0, qfirst=0, align=0, idrot=0).items():
        ap.add_argument("--" + k, type=int, default=d)
    ap.add_argument('--rounds', default='144,208')
    ap.add_argument('--sfl', default='nt')
    ap.add_argument('--efl', default='')
    ap.add_argument("-o", default="-")
    a = vars(ap.parse_args())
    o = a.pop("o")
    s = gen(**a)
    (sys.stdout if o == "-" else open(o, "w")).write(s)
```

```python
import sys, argparse

NAME = "standalone__low_rank_proj_linformer__sampling"
HEADER = open('cdna_kernels/' + NAME + '.s.ref').read().split('; @launch')[0]

DOC = """; ---------------------------------------------------------------------------------------------------------
; ---------------------------------------------------------------------------------------------------------
"""


def gen(mid=9, rounds='144,208', wlen=16, mark=4, med=3, s0=7, gain=10, sgain=4, slowc=7, ts=0, tsdiv=4, ldsx=98304,
        am=-12, lastfree=1, mov64=1, warmv=1, bias=0, bias2=0, midpos=3, bar=0, qfirst=0, align=0, idrot=0, slowb=0, sfl='nt', efl=''):
    rl = [int(x) for x in rounds.split(',')] if rounds else []
    fb = 1 if rl else 0
    assert not fb or rl[0] + am >= 132
    W, NB = 2, 2
    L = []
    A = L.append
    BPM = 64
    SLOT = W * 8192
    QBASE = 2 * SLOT
    lds = max(QBASE + 16384, ldsx)
    A(HEADER + f"; @launch grid=(256,1,1) block=(128,1,1) lds={lds}")
    A(DOC.rstrip())
    A('.amdgcn_target "amdgcn-amd-amdhsa--gfx950"')
    A(".text")
    A(f".globl {NAME}_kernel")
    A(".p2align 8")
    A(f".type {NAME}_kernel,@function")
    A(f"{NAME}_kernel:")
    VOFF_D, VOFF_E, VLDS_Q, VOFF_O, VTS, VLDS_W, VLDS_R = 1, 2, 3, 4, 5, 6, 7
    ACC = 8
    T = [40, 44]
    P0, P1 = 48, 50
    VPL = [52, 53]
    VPS, VPO = 54, 55
    X = 56
    Q = 72
    Y = 88
    BUF0 = 120
    def bufd(b, i): return BUF0 + 36 * b + 4 * i
    def bufe(b): return BUF0 + 36 * b + 32
    NV = BUF0 + 36 * NB
    VAT, VPF, VONE = NV, NV + 1, NV + 2
    NV += 3
    SD, SP, SQ, SO, SG = 16, 20, 24, 28, 32
    SVB, SFB = 36, 38
    SSEL0, SSEL1, SIT, SDOFF, SEOFF, SWAVE, SMAT, SCNT, SOOFF = 40, 41, 42, 43, 44, 45, 46, 47, 49
    SCTL, SREP, STS = 56, 57, 63
    SWIN, SPO, SLIST, SPFO, SH = 64, 65, 66, 67, 68
    uid = [0]
    def lab(p):
        uid[0] += 1
        return f"L_{p}{uid[0]}"

    def stamp(inloop=False):
        if not ts:
            return
        lbl = lab("ts")
        if inloop and tsdiv > 1:
            A(f"    s_and_b32 s52, s{SIT}, {tsdiv-1}")
            A(f"    s_cmp_lg_u32 s52, {tsdiv-1}")
            A(f"    s_cbranch_scc1 {lbl}")
        A("    s_memrealtime s[50:51]")
        A(f"    s_mov_b32 m0, s{STS}")
        A("    s_waitcnt lgkmcnt(0)")
        A(f"    v_writelane_b32 v{VTS}, s50, m0")
        A(f"    s_add_u32 s{STS}, s{STS}, 1")
        A(f"{lbl}:")

    A("    s_cmp_ge_u32 s2, 256")
    A("    s_cbranch_scc1 L_end")
    if ts:
        A(f"    s_mov_b32 s{STS}, 0")
        A(f"    v_mov_b32 v{VTS}, 0")
        stamp()
    A("    s_load_dwordx8 s[4:11], s[0:1], 0           ; q, k, v, e_proj")
    A("    s_load_dwordx4 s[12:15], s[0:1], 32")
    A(f"    s_load_dwordx2 s[{SG}:{SG+1}], s[0:1], 48         ; debug")
    if ts:
        A("    s_load_dwordx2 s[58:59], s[0:1], 56")
    A("    v_lshrrev_b32 v8, 6, v0                     ; wave")
    A("    v_and_b32 v9, 15, v0                        ; lane & 15")
    A("    v_bfe_u32 v10, v0, 4, 2                     ; g = lane >> 4")
    A(f"    v_readfirstlane_b32 s{SWAVE}, v8")
    A(f"    v_lshlrev_b32 v{VOFF_D}, 13, v8")
    A(f"    v_lshl_add_u32 v{VOFF_D}, v10, 11, v{VOFF_D}")
    A(f"    v_lshl_add_u32 v{VOFF_D}, v9, 4, v{VOFF_D}")
    A(f"    v_lshlrev_b32 v{VOFF_E}, 13, v9")
    A(f"    v_lshl_add_u32 v{VOFF_E}, v10, 4, v{VOFF_E}")
    A(f"    v_lshl_add_u32 v{VOFF_E}, v8, 6, v{VOFF_E}")
    if idrot:
        A(f"    s_lshl_b32 s3, s2, {idrot}")
        A(f"    s_lshr_b32 s55, s2, {8-idrot}")
        A("    s_or_b32 s3, s3, s55")
        A("    s_and_b32 s3, s3, 255")
        A("    s_lshl_b32 s55, s3, 14")
        A("    s_lshl_b32 s3, s3, 21")
    else:
        A("    s_lshl_b32 s3, s2, 21")
        A("    s_lshl_b32 s55, s2, 14")
    A(f"    s_mov_b32 s{SD+2}, 0x200000")
    A(f"    s_mov_b32 s{SD+3}, 0x20000")
    A(f"    s_mov_b32 s{SP+2}, 0x20000")
    A(f"    s_mov_b32 s{SP+3}, 0x20000")
    A(f"    s_mov_b32 s{SDOFF}, 0")
    A(f"    s_mov_b32 s{SEOFF}, 0")
    A(f"    s_mov_b32 s{SCNT}, 0")
    A("    s_waitcnt lgkmcnt(0)")
    A(f"    s_add_u32 s{SD}, s6, s3")
    A(f"    s_addc_u32 s{SD+1}, s7, 0")
    A(f"    s_mov_b32 s{SP}, s10")
    A(f"    s_mov_b32 s{SP+1}, s11")

    stubs = []
    def poll(b):
        A(f"    buffer_load_dword v{VPL[b]}, v{VPO}, s[{SG}:{SG+3}], s{SPO} offen sc1")

    def loads(b, isK, midwait):
        for i in range(8):
            r = bufd(b, i)
            off = f" offset:{i*256}" if i else ""
            if i == midpos and midwait:
                midwait()
            A(f"    buffer_load_dwordx4 v[{r}:{r+3}], v{VOFF_D}, s[{SD}:{SD+3}], s{SDOFF} offen{off} {sfl.replace('_',' ')}")
        A(f"    buffer_load_dwordx4 v[{bufe(b)}:{bufe(b)+3}], v{VOFF_E}, s[{SP}:{SP+3}], s{SEOFF} offen{(' '+efl.replace('_',' ')) if efl else ''}")
        if fb and not isK:
            A(f"    v_add_u32 v{VPS}, v{VPS}, v{VPL[b]}")
            poll(b)
        A(f"    s_add_u32 s{SDOFF}, s{SDOFF}, {hex(W*0x2000)}")
        A(f"    s_add_u32 s{SEOFF}, s{SEOFF}, {W*64}")
        A(f"    s_and_b32 s{SEOFF}, s{SEOFF}, 0x1fff")
        A(f"    s_add_u32 s{SCNT}, s{SCNT}, 1")
        if isK and midwait and b == 1:
            A(f"    s_cmp_eq_u32 s{SCNT}, {2*BPM}")
            A(f"    s_cselect_b64 s[{SD}:{SD+1}], s[{SVB}:{SVB+1}], s[{SD}:{SD+1}]")
            A(f"    s_cselect_b64 s[{SP}:{SP+1}], s[{SFB}:{SFB+1}], s[{SP}:{SP+1}]")
            A(f"    s_cselect_b32 s{SDOFF}, 0, s{SDOFF}")
        if fb and not isK and b == 1:
            A(f"    s_sub_u32 s52, s{SCNT}, s{SWIN}")
            A(f"    s_cmp_lt_u32 s52, {wlen}")
            A(f"    s_cselect_b32 s{SG+2}, 128, 0")
            stub, back, chk = lab("rp"), lab("rb"), lab("rc")
            A(f"    s_cmp_eq_u32 s{SREP}, 0")
            A(f"    s_cbranch_scc1 {stub}")
            A(f"{back}:")
            dst, dbk = lab("dc"), lab("db")
            A(f"    s_cmp_eq_u32 s52, {wlen+2}")
            A(f"    s_cbranch_scc1 {dst}")
            A(f"{dbk}:")
            stubs.append([f"{dst}:                                      ; window consumed: lateness -> number of widened / narrowed groups",
                f"    v_readfirstlane_b32 s53, v{VPS}",
                f"    v_mov_b32 v{VPS}, 0",
                f"    s_add_u32 s{SPO}, s{SPO}, 4",
                f"    s_sub_i32 s53, s53, {s0}",
                f"    s_mul_i32 s54, s53, {gain}",
                f"    s_mul_i32 s{SCTL}, s53, {sgain}",
                f"    s_cmp_gt_i32 s53, 0",
                f"    s_cselect_b32 s{SCTL}, s54, s{SCTL}"] + ([f"    s_add_i32 s{SCTL}, s{SCTL}, s48"] if bias2 else []) + [
                f"    s_and_b32 s{SWIN}, s{SLIST}, 0xff",
                f"    s_cselect_b32 s{SWIN}, s{SWIN}, 0x10000",
                f"    s_lshr_b32 s{SLIST}, s{SLIST}, 8",
                f"    s_branch {dbk}"])
            stubs.append([f"{stub}:                                      ; representatives: count in, the median arriver publishes the mark",
                f"    s_cmp_eq_u32 s52, {mark+4}",
                f"    s_cbranch_scc1 {chk}",
                f"    s_cmp_lg_i32 s52, {am}",
                f"    s_cbranch_scc1 {back}",
                f"    v_mov_b32 v{VAT}, 1",
                f"    s_mov_b64 exec, 1",
                f"    buffer_atomic_add v{VAT}, off, s[{SH}:{SH+3}], s{SPO} offset:128 sc0 sc1",
                f"    s_mov_b64 exec, -1",
                f"    s_branch {back}",
                f"{chk}:",
                f"    v_readfirstlane_b32 s53, v{VAT}",
                f"    v_mov_b32 v{VONE}, 1",
                f"    s_cmp_lg_u32 s53, {med}",
                f"    s_cbranch_scc1 {back}",
                f"    s_mov_b64 exec, 1",
                f"    buffer_store_dword v{VONE}, off, s[{SH}:{SH+3}], s{SPO} sc1",
                f"    s_mov_b64 exec, -1",
                f"    s_branch {back}"])

    def perms(b, e):
        w, h = e >> 1, e & 1
        t = T[e & 1]
        sel = SSEL1 if h else SSEL0
        for q in range(4):
            lo_ = bufd(b, 2 * q) + w
            hi_ = bufd(b, 2 * q + 1) + w
            A(f"    v_perm_b32 v{t+q}, v{hi_}, v{lo_}, s{sel}")

    def mfma(b, e, isK):
        t = T[e & 1]
        a = ACC + 4 * e
        eb = bufe(b)
        if isK:
            A(f"    v_mfma_f32_16x16x32_bf16 v[{a}:{a+3}], v[{t}:{t+3}], v[{eb}:{eb+3}], v[{a}:{a+3}]")
        else:
            A(f"    v_mfma_f32_16x16x32_bf16 v[{a}:{a+3}], v[{eb}:{eb+3}], v[{t}:{t+3}], v[{a}:{a+3}]")

    def compute(b, isK):
        perms(b, 0)
        for e in range(8):
            if e < 7:
                perms(b, e + 1)
            else:
                A("    s_nop 1")
            mfma(b, e, isK)

    for b in range(NB - qfirst):
        loads(b, True, None)
    A(f"    s_add_u32 s{SQ}, s4, s55")
    A(f"    s_addc_u32 s{SQ+1}, s5, 0")
    A(f"    s_mov_b32 s{SQ+2}, 0x4000")
    A(f"    s_mov_b32 s{SQ+3}, 0x20000")
    A(f"    s_lshl_b32 s53, s{SWAVE}, 13")
    A(f"    v_and_b32 v12, 63, v0")
    A(f"    v_lshlrev_b32 v{VPF}, 4, v12                  ; lane * 16")
    for j0 in range(0, 8, 4):
        A(f"    s_add_u32 s54, s53, {QBASE}")
        A("    s_mov_b32 m0, s54")
        A("    s_nop 0")
        for j in range(4):
            off = f" offset:{j*1024}" if j else ""
            A(f"    buffer_load_dwordx4 v{VPF}, s[{SQ}:{SQ+3}], s53 offen{off} nt lds")
        if j0 == 0:
            A(f"    s_add_u32 s53, s53, 0x1000")
    A(f"    s_lshr_b32 s{SPFO}, s2, 3")
    A(f"    s_lshl_b32 s{SPFO}, s{SPFO}, 1")
    A(f"    s_add_u32 s{SPFO}, s{SPFO}, s{SWAVE}")
    A(f"    s_lshl_b32 s{SPFO}, s{SPFO}, 11")
    A(f"    buffer_load_dwordx4 v[{Y}:{Y+3}], v{VPF}, s[{SP}:{SP+3}], s{SPFO} offen")
    A(f"    buffer_load_dwordx4 v[{Y+4}:{Y+7}], v{VPF}, s[{SP}:{SP+3}], s{SPFO} offen offset:1024")
    for b in range(NB - qfirst, NB):
        loads(b, True, None)
    A(f"    s_add_u32 s{SVB}, s8, s3")
    A(f"    s_addc_u32 s{SVB+1}, s9, 0")
    A(f"    s_mov_b32 s{SFB}, s12")
    A(f"    s_mov_b32 s{SFB+1}, s13")
    A(f"    s_add_u32 s{SO}, s14, s55")
    A(f"    s_addc_u32 s{SO+1}, s15, 0")
    A(f"    s_mov_b32 s{SO+2}, 0x4000")
    A(f"    s_mov_b32 s{SO+3}, 0x20000")
    if warmv:
        A(f"    s_load_dword s53, s[{SVB}:{SVB+1}], 0")
    if fb:
        A(f"    s_mov_b32 s{SG+2}, 0")
        A(f"    s_mov_b32 s{SG+3}, 0x20000")
        A(f"    s_mov_b32 s{SH}, s{SG}")
        A(f"    s_mov_b32 s{SH+1}, s{SG+1}")
        A(f"    s_mov_b32 s{SH+2}, 256")
        A(f"    s_mov_b32 s{SH+3}, 0x20000")
        A(f"    s_mov_b32 s{SWIN}, {rl[0]}")
        A(f"    s_mov_b32 s{SLIST}, {hex(sum(v << (8*i) for i, v in enumerate(rl[1:])))}")
        A(f"    s_mov_b32 s{SPO}, 0")
        if bias or bias2:
            A("    s_getreg_b32 s48, hwreg(HW_REG_XCC_ID)")
            A("    s_and_b32 s48, s48, 1")
            A(f"    s_cselect_b32 s{SCTL}, 0, {bias}")
            A(f"    s_cselect_b32 s48, 0, {bias2}")
        else:
            A(f"    s_mov_b32 s{SCTL}, 0")
        A(f"    s_cmp_lt_u32 s2, 8")
        A(f"    s_cselect_b32 s{SREP}, s{SWAVE}, 1")
        A(f"    v_mov_b32 v{VPS}, 0")
        A(f"    v_mov_b32 v{VPL[0]}, 0")
        A(f"    v_mov_b32 v{VPL[1]}, 0")
        A(f"    v_lshlrev_b32 v{VPO}, 8, v12")
    A(f"    s_mov_b32 s{SSEL0}, 0x05040100")
    A(f"    s_mov_b32 s{SSEL1}, 0x07060302")
    A("    s_mov_b32 s60, 0x3db504f3                   ; 128^-0.5")
    A("    s_mov_b32 s61, 0xffff0000")
    A("    s_mov_b32 s62, 0x3fb8aa3b                   ; log2(e)")
    A(f"    v_lshl_add_u32 v{VLDS_W}, v8, 13, v{VPF}")
    A(f"    v_xor_b32 v{VLDS_R}, 0x2000, v{VLDS_W}")
    A(f"    v_lshlrev_b32 v{VLDS_Q}, 12, v8")
    A(f"    v_lshl_add_u32 v{VLDS_Q}, v9, 8, v{VLDS_Q}")
    A(f"    v_lshl_add_u32 v{VLDS_Q}, v10, 6, v{VLDS_Q}")
    A(f"    v_add_u32 v{VLDS_Q}, {QBASE}, v{VLDS_Q}")
    A(f"    v_lshlrev_b32 v{VOFF_O}, 12, v8")
    A(f"    v_lshl_add_u32 v{VOFF_O}, v10, 10, v{VOFF_O}")
    A(f"    v_lshl_add_u32 v{VOFF_O}, v9, 4, v{VOFF_O}")
    A(f"    v_mov_b32 v{P1}, 0")
    A(f"    v_mov_b32 v{P1+1}, 0")

    def zero_acc():
        if mov64:
            for i in range(0, 32, 2):
                A(f"    v_mov_b64 v[{ACC+i}:{ACC+i+1}], 0")
        else:
            for i in range(32):
                A(f"    v_mov_b32 v{ACC+i}, 0")

    NI = BPM // NB
    def midwait(isK, b):
        c = mid + (1 if fb and not isK else 0)
        def f():
            back = lab("cb")
            if lastfree and b == 1:
                A(f"    s_cmp_eq_u32 s{SIT}, {NI-1}")
                A(f"    s_cbranch_scc1 {back}")
            if fb and not isK:
                stub, sl, nrm = lab("cs"), lab("sl"), lab("cn")
                if slowb and b == 1:
                    A(f"    s_cmp_gt_i32 s{SCTL}, 0")
                    A(f"    s_cbranch_scc1 {stub}")
                    stubs.append([f"{stub}:",
                        f"    s_sub_u32 s{SCTL}, s{SCTL}, 1",
                        f"    s_branch {back}"])
                else:
                    A(f"    s_cmp_lg_u32 s{SCTL}, 0")
                    A(f"    s_cbranch_scc1 {stub}")
                    A(f"{nrm}:")
                    code = [f"{stub}:",
                        f"    s_cmp_lt_i32 s{SCTL}, 0",
                        f"    s_cbranch_scc1 {sl}",
                        f"    s_sub_u32 s{SCTL}, s{SCTL}, 1",
                        f"    s_branch {back}",
                        f"{sl}:"]
                    if slowb > 1:
                        code += [f"    s_and_b32 s52, s{SIT}, {slowb-1}", f"    s_cbranch_scc1 {nrm}"]
                    code += [
                        f"    s_add_u32 s{SCTL}, s{SCTL}, 1",
                        f"    s_waitcnt vmcnt({slowc+1})",
                        f"    s_branch {back}"]
                    stubs.append(code)
            A(f"    s_waitcnt vmcnt({c})")
            A(f"{back}:")
        return f

    def flush_stubs():
        if stubs:
            after = lab("after")
            A(f"    s_branch {after}")
            for c in stubs:
                for l in c:
                    A(l)
            A(f"{after}:")
            stubs.clear()

    def loop(nm, isK):
        A(f"    s_mov_b32 s{SIT}, 0")
        if align:
            A(f"    .p2align {align}")
        A(f"L_{nm}:")
        for b in range(NB):
            A(f"    s_waitcnt vmcnt({9 if (isK or not fb) else 11})")
            compute(b, isK)
            if isK:
                loads(b, True, midwait(True, b))
            else:
                stub, back = lab("stub"), lab("back")
                A(f"    s_cmp_eq_u32 s{SCNT}, {4*BPM}")
                A(f"    s_cbranch_scc1 {stub if b == 0 else back}")
                loads(b, False, midwait(False, b))
                A(f"{back}:")
                if b == 0:
                    stubs.append([f"{stub}:", "    s_waitcnt vmcnt(0)", f"    s_branch {back}"])
        stamp(True)
        A(f"    s_add_u32 s{SIT}, s{SIT}, 1")
        if bar:
            sk = lab("nb")
            if bar > 1:
                A(f"    s_and_b32 s52, s{SIT}, {bar-1}")
                A(f"    s_cbranch_scc1 {sk}")
            A("    s_barrier")
            A(f"{sk}:")
        A(f"    s_cmp_lt_u32 s{SIT}, {NI}")
        A(f"    s_cbranch_scc1 L_{nm}")
        flush_stubs()

    def exchange():
        A("    s_nop 7")
        for e in range(8):
            a = ACC + 4 * e
            A(f"    ds_write_b128 v{VLDS_W}, v[{a}:{a+3}] offset:{e*1024}")
        A("    s_waitcnt lgkmcnt(0)")
        A("    s_barrier")
        for e in range(8):
            A(f"    ds_read_b128 v[{Y+4*e}:{Y+4*e+3}], v{VLDS_R} offset:{e*1024}")

    def addp(extra=0):
        for e in range(8):
            a, t = ACC + 4 * e, Y + 4 * e
            A(f"    s_waitcnt lgkmcnt({7-e+extra})")
            A(f"    v_pk_add_f32 v[{a}:{a+1}], v[{a}:{a+1}], v[{t}:{t+1}]")
            A(f"    v_pk_add_f32 v[{a+2}:{a+3}], v[{a+2}:{a+3}], v[{t+2}:{t+3}]")

    def next_slot():
        A(f"    v_xor_b32 v{VLDS_W}, {SLOT}, v{VLDS_W}")
        A(f"    v_xor_b32 v{VLDS_R}, {SLOT}, v{VLDS_R}")

    A(f"    s_mov_b32 s{SMAT}, 0")
    A("L_kouter:")
    zero_acc()
    loop("kloop", True)
    exchange()
    for i in range(4):
        A(f"    ds_read_b128 v[{Q+4*i}:{Q+4*i+3}], v{VLDS_Q} offset:{16*i}")
    addp(4)
    for i in range(4):
        for p in range(4):
            A(f"    v_cvt_pk_bf16_f32 v{X+4*i+p}, v{ACC+4*(2*p)+i}, v{ACC+4*(2*p+1)+i}")
    S, U = T[0], T[1]
    A(f"    s_waitcnt lgkmcnt(0)")
    for i in range(4):
        c = "0" if i == 0 else f"v[{S}:{S+3}]"
        A(f"    v_mfma_f32_16x16x32_bf16 v[{S}:{S+3}], v[{X+4*i}:{X+4*i+3}], v[{Q+4*i}:{Q+4*i+3}], {c}")
    A("    s_nop 7")
    A(f"    v_cvt_pk_bf16_f32 v{U}, v{S}, v{S+1}")
    A(f"    v_cvt_pk_bf16_f32 v{U+1}, v{S+2}, v{S+3}")
    A(f"    v_lshlrev_b32 v{S}, 16, v{U}")
    A(f"    v_and_b32 v{S+1}, s61, v{U}")
    A(f"    v_lshlrev_b32 v{S+2}, 16, v{U+1}")
    A(f"    v_and_b32 v{S+3}, s61, v{U+1}")
    for i in range(4):
        A(f"    v_mul_f32 v{S+i}, s60, v{S+i}")
    A(f"    v_cvt_pk_bf16_f32 v{U}, v{S}, v{S+1}")
    A(f"    v_cvt_pk_bf16_f32 v{U+1}, v{S+2}, v{S+3}")
    A(f"    v_lshlrev_b32 v{S}, 16, v{U}")
    A(f"    v_and_b32 v{S+1}, s61, v{U}")
    A(f"    v_lshlrev_b32 v{S+2}, 16, v{U+1}")
    A(f"    v_and_b32 v{S+3}, s61, v{U+1}")
    M, M2 = U, U + 1
    A(f"    v_max_f32 v{M}, v{S}, v{S+1}")
    A(f"    v_max3_f32 v{M}, v{M}, v{S+2}, v{S+3}")
    def xreduce(op):
        A(f"    v_mov_b32 v{M2}, v{M}")
        A("    s_nop 1")
        A(f"    v_permlane16_swap_b32 v{M}, v{M2}")
        A(f"    {op} v{M}, v{M}, v{M2}")
        A(f"    v_mov_b32 v{M2}, v{M}")
        A("    s_nop 1")
        A(f"    v_permlane32_swap_b32 v{M}, v{M2}")
        A(f"    {op} v{M}, v{M}, v{M2}")
    xreduce("v_max_f32")
    for i in range(4):
        A(f"    v_sub_f32 v{S+i}, v{S+i}, v{M}")
    for i in range(4):
        A(f"    v_mul_f32 v{S+i}, s62, v{S+i}")
    for i in range(4):
        A(f"    v_exp_f32 v{S+i}, v{S+i}")
    A("    s_nop 0")
    A(f"    v_add_f32 v{M}, v{S}, v{S+1}")
    A(f"    v_add_f32 v{M2}, v{S+2}, v{S+3}")
    A(f"    v_add_f32 v{M}, v{M}, v{M2}")
    xreduce("v_add_f32")
    A(f"    v_rcp_f32 v{M}, v{M}")
    A("    s_nop 0")
    for i in range(4):
        A(f"    v_mul_f32 v{S+i}, v{S+i}, v{M}")
    A(f"    v_mov_b32 v{P0}, v{P1}")
    A(f"    v_mov_b32 v{P0+1}, v{P1+1}")
    A(f"    v_cvt_pk_bf16_f32 v{P1}, v{S}, v{S+1}")
    A(f"    v_cvt_pk_bf16_f32 v{P1+1}, v{S+2}, v{S+3}")
    next_slot()
    A(f"    s_cmp_lg_u32 s{SMAT}, 0")
    A("    s_cbranch_scc1 L_kdone")
    A(f"    s_mov_b32 s{SQ}, s{SFB}")
    A(f"    s_mov_b32 s{SQ+1}, s{SFB+1}")
    A(f"    s_mov_b32 s{SQ+2}, 0x20000")
    A(f"    buffer_load_dwordx4 v[{Y}:{Y+3}], v{VPF}, s[{SQ}:{SQ+3}], s{SPFO} offen")
    A(f"    buffer_load_dwordx4 v[{Y+4}:{Y+7}], v{VPF}, s[{SQ}:{SQ+3}], s{SPFO} offen offset:1024")
    A(f"    v_add_u32 v{VLDS_Q}, 0x2000, v{VLDS_Q}")
    A(f"    s_mov_b32 s{SMAT}, 1")
    A("    s_branch L_kouter")
    A("L_kdone:")
    A(f"    s_mov_b32 s{SMAT}, 0")
    if fb:
        A("    ; two (empty) polls behind the groups in flight make the V loop's wait counts exact from its first pass")
        poll(0)
        poll(1)
    A("L_vouter:")
    zero_acc()
    loop("vloop", False)
    A(f"    s_cmp_eq_u32 s{SMAT}, 0")
    A("    s_cbranch_scc1 L_noest")
    for i in range(4):
        r = Q + 4 * i
        A(f"    buffer_store_dwordx4 v[{r}:{r+3}], v{VOFF_O}, s[{SO}:{SO+3}], 0 offen offset:{256*i} nt")
    A("L_noest:")
    exchange()
    addp()
    for e in range(8):
        a = ACC + 4 * e
        A(f"    v_cvt_pk_bf16_f32 v{X+2*e}, v{a}, v{a+1}")
        A(f"    v_cvt_pk_bf16_f32 v{X+2*e+1}, v{a+2}, v{a+3}")
    A("    s_nop 1")
    for e in range(8):
        o = Y + 4 * e
        A(f"    v_mfma_f32_16x16x16_bf16 v[{o}:{o+3}], v[{P0}:{P0+1}], v[{X+2*e}:{X+2*e+1}], 0")
    A("    s_nop 7")
    A(f"    s_cmp_lg_u32 s{SMAT}, 0")
    A("    s_cbranch_scc1 L_vlast")
    for i in range(4):
        r = Q + 4 * i
        for p in range(4):
            A(f"    v_cvt_pk_bf16_f32 v{r+p}, v{Y+4*(2*p)+i}, v{Y+4*(2*p+1)+i}")
    A(f"    v_mov_b32 v{P0}, v{P1}")
    A(f"    v_mov_b32 v{P0+1}, v{P1+1}")
    next_slot()
    A(f"    s_mov_b32 s{SMAT}, 1")
    A("    s_branch L_vouter")
    A("L_vlast:")
    A(f"    s_movk_i32 s{SOOFF}, 0x2000")
    for i in range(4):
        r = ACC + 4 * i
        for p in range(4):
            A(f"    v_cvt_pk_bf16_f32 v{r+p}, v{Y+4*(2*p)+i}, v{Y+4*(2*p+1)+i}")
        A(f"    buffer_store_dwordx4 v[{r}:{r+3}], v{VOFF_O}, s[{SO}:{SO+3}], s{SOOFF} offen offset:{256*i} nt")
    if ts:
        stamp()
        A("    s_getreg_b32 s60, hwreg(HW_REG_XCC_ID)")
        A("    s_getreg_b32 s61, hwreg(HW_REG_HW_ID)")
        A(f"    v_writelane_b32 v{VTS}, s60, 62")
        A(f"    v_writelane_b32 v{VTS}, s61, 63")
        A(f"    s_mul_i32 s62, s2, {W*256}")
        A("    s_add_u32 s58, s58, s62")
        A("    s_addc_u32 s59, s59, 0")
        A("    v_lshlrev_b32 v120, 2, v0")
        A(f"    global_store_dword v120, v{VTS}, s[58:59]")
    A("L_end:")
    A("    s_endpgm")
    A('.section .rodata,"a"')
    A(".p2align 6")
    A(f".amdhsa_kernel {NAME}_kernel")
    A(f"  .amdhsa_next_free_vgpr {NV}")
    A("  .amdhsa_next_free_sgpr 72")
    A(f"  .amdhsa_accum_offset {min(256,(NV+3)//4*4)}")
    A("  .amdhsa_group_segment_fixed_size 0")
    A("  .amdhsa_kernarg_size 64")
    A("  .amdhsa_user_sgpr_count 2")
    A("  .amdhsa_user_sgpr_kernarg_segment_ptr 1")
    A("  .amdhsa_system_sgpr_workgroup_id_x 1")
    A("  .amdhsa_float_denorm_mode_32 3")
    A(".end_amdhsa_kernel")
    return "\n".join(L) + "\n"


if __name__ == "__main__":
    ap = argparse.ArgumentParser()
    for k, d in dict(mid=9, wlen=16, mark=4, med=3, s0=7, gain=10, sgain=4, slowc=7, ts=0, tsdiv=4, ldsx=98304, am=-12,
                     lastfree=1, mov64=1, warmv=1, bias=0, bias2=0, midpos=3, bar=0, qfirst=0, align=0, idrot=0, slowb=0).items():
        ap.add_argument("--" + k, type=int, default=d)
    ap.add_argument('--rounds', default='144,208')
    ap.add_argument('--sfl', default='nt')
    ap.add_argument('--efl', default='')
    ap.add_argument("-o", default="-")
    a = vars(ap.parse_args())
    o = a.pop("o")
    s = gen(**a)
    (sys.stdout if o == "-" else open(o, "w")).write(s)
```
